```python
import torch

def _softmax(x, axis=-1):
    return torch.softmax(x, dim=axis)
def _gelu(x):
    return torch.nn.functional.gelu(x, approximate="tanh")
def _silu(x):
    return torch.nn.functional.silu(x)
def _sigmoid(x):
    return torch.sigmoid(x)
def _layernorm(x, axis=-1, eps=1e-5):
    m = x.mean(dim=axis, keepdim=True)
    v = x.var(dim=axis, keepdim=True, unbiased=False)
    return (x - m) / torch.sqrt(v + eps)
def _scatter_add(tgt, idx, src, axis=0):
    return tgt.clone().index_add_(axis, idx, src)
def _segment_sum(src, seg, n):
    out = torch.zeros((n,) + src.shape[1:], dtype=src.dtype)
    return out.index_add_(0, seg, src)
def _pad(x, pw):
    flat = tuple(v for pair in reversed(pw) for v in pair)
    return torch.nn.functional.pad(x, flat)

kernel_name = 'standalone__dense_activation_relu__prompt'

def setup_inputs():

    _w = (lambda a: (lambda t: t.to(torch.bfloat16) if t.is_floating_point() else t)(torch.as_tensor(a)))
    B, S, D, Dff = 1, 2048, 640, 1728
    return {
        "x": _w((lambda *s: torch.randn(*s, dtype=torch.bfloat16) * 0.05)(B, S, D)),
        "w1": _w((lambda *s: torch.randn(*s, dtype=torch.bfloat16) * 0.05)(D, Dff)),
        "w2": _w((lambda *s: torch.randn(*s, dtype=torch.bfloat16) * 0.05)(Dff, D)),
    }

def reference(x, w1, w2):
    h = torch.einsum("bsd,df->bsf", x, w1)
    zero = torch.zeros_like(h)
    h = torch.maximum(h, zero)
    return torch.einsum("bsf,fd->bsd", h, w2)
```

```python
import sys, argparse
ap = argparse.ArgumentParser()
ap.add_argument("--fused", type=int, default=1)
ap.add_argument("--diag", type=int, default=0)
ap.add_argument("--ns", type=int, default=5)
ap.add_argument("--wearly", type=int, default=8)
ap.add_argument("--wlate", type=int, default=16)
ap.add_argument("--safe", type=int, default=0)
ap.add_argument("--map2", type=int, default=81)
ap.add_argument("--pf", type=int, default=1)
ap.add_argument("--hsc1", type=int, default=1)
A = ap.parse_args()

KN = "standalone__dense_activation_relu__prompt_kernel"
HP_OFF = 0
W2P_OFF = 0x700000
FLAG_OFF = 0xA00000
W2F_OFF = FLAG_OFF + 4096
DIAG_OFF = 0xB00000
WS_SIZE = 0xC00000
BIG = 0x40000000
NS = A.ns
NIT = 10
SPIN = 200000


class Em:
    def __init__(s):
        s.l = []
        s.vm = []
        s.nts = 0

    def __call__(s, x):
        for y in x.split("\n"):
            s.l.append("    " + y)

    def label(s, x):
        s.l.append(x + ":")

    def vmem(s, x, tag):
        s(x)
        s.vm.append(tag)

    def vmwait(s, pred, also=""):
        idx = -1
        for i, t in enumerate(s.vm):
            if pred(t):
                idx = i
        if idx < 0:
            if also:
                s("s_waitcnt " + also)
            return
        n = len(s.vm) - 1 - idx
        n = min(n, 63)
        s(f"s_waitcnt vmcnt({n}) {also}".rstrip())
        s.vm = s.vm[len(s.vm) - n:] if n else []

    def ts(s):
        if A.diag:
            k = s.nts
            s(f"s_memrealtime s[{64+2*k}:{65+2*k}]")
            s("s_waitcnt lgkmcnt(0)")
            s.nts += 1


e = Em()

SX, SW1, SWS, SOUT, SDBG, SW2 = 16, 20, 24, 28, 32, 36
sXCD, sSLOT, sRB, sNT, sT0, sT1, sT2, sT3 = 40, 41, 42, 43, 44, 45, 46, 47
sLDSW, sXO, sWO, sH0, sH1 = 48, 49, 50, 51, 52
sT64, sD80, sP2W, sP2H, sCNT = 53, 54, 55, 56, 57
sNON = 58
sPC = 60
sJ = 62


def srd(b, ptr, size):
    e(f"s_mov_b32 s{b}, s{ptr}")
    e(f"s_mov_b32 s{b+1}, s{ptr+1}")
    e(f"s_mov_b32 s{b+2}, {size}")
    e(f"s_mov_b32 s{b+3}, 0x00020000")


def S(b):
    return f"s[{b}:{b+3}]"


def V(b, n=4):
    return f"v[{b}:{b+n-1}]"


def common_head(end_label, pc=True):
    e("s_load_dwordx8 s[4:11], s[0:1], 0")
    if pc:
        e(f"s_getpc_b64 s[{sPC}:{sPC+1}]")
        e.label("L_pc")
    e("s_load_dwordx4 s[12:15], s[0:1], 32")
    e(f"s_cmp_ge_u32 s2, 256")
    e(f"s_cbranch_scc1 {end_label}")
    e("v_and_b32 v1, 63, v0")
    e("v_lshrrev_b32 v2, 6, v0")
    e(f"s_and_b32 s{sXCD}, s2, 7")
    e("v_readfirstlane_b32 s3, v2")
    e(f"s_lshr_b32 s{sSLOT}, s2, 3")


def code_prefetch():
    e(f"s_lshl_b32 s{sJ}, s{sSLOT}, 2")
    e(f"s_add_u32 s{sJ}, s{sJ}, s3")
    e(f"s_lshl_b32 s{sJ}, s{sJ}, 6")
    e.l.append("@@PF@@")


vX, vW = 10, 14
vB, vAa = 18, 30
FR = [36, 52]
ACC = 68
HOUT = 176
vHS = 8
ACC2 = 176
WX = 136
HR = 24
NHR = 7
vWL, vWL2 = 10, 11
vHL = 12
vRW = 16
vRR = 19
vOS = 20
vFL = 21
vFW = 22
vZ = 23
vPOL = 2


def acc(ft, tt):
    return ACC + (tt * 2 + ft) * 16


def wreg(i, dt):
    if i < 12:
        b = (i * 5 + dt) * 4
        return f"a[{b}:{b+3}]"
    b = WX + ((i - 12) * 5 + dt) * 4
    return f"v[{b}:{b+3}]"


def p2_setup():
    if A.map2 == 81:
        e(f"s_lshl_b32 s{sT64}, s{sXCD}, 2")
        e(f"s_lshr_b32 s{sT0}, s{sSLOT}, 3")
        e(f"s_add_u32 s{sT64}, s{sT64}, s{sT0}")
        e(f"s_and_b32 s{sD80}, s{sSLOT}, 7")
    else:
        e(f"s_lshr_b32 s{sT64}, s{sXCD}, 1")
        e(f"s_lshl_b32 s{sT64}, s{sT64}, 3")
        e(f"s_lshr_b32 s{sT0}, s{sSLOT}, 2")
        e(f"s_add_u32 s{sT64}, s{sT64}, s{sT0}")
        e(f"s_and_b32 s{sD80}, s{sXCD}, 1")
        e(f"s_lshl_b32 s{sD80}, s{sD80}, 2")
        e(f"s_and_b32 s{sT0}, s{sSLOT}, 3")
        e(f"s_add_u32 s{sD80}, s{sD80}, s{sT0}")
    e(f"s_mul_i32 s{sP2W}, s3, 40960")
    e(f"s_mul_i32 s{sT0}, s{sD80}, 5120")
    e(f"s_add_u32 s{sP2W}, s{sP2W}, s{sT0}")
    e(f"s_add_u32 s{sP2W}, s{sP2W}, {W2P_OFF}")
    e(f"s_mul_i32 s{sP2H}, s{sT64}, 54")
    e(f"s_add_u32 s{sP2H}, s{sP2H}, s3")
    e(f"s_lshl_b32 s{sP2H}, s{sP2H}, 12")
    e(f"v_lshlrev_b32 v{vWL}, 4, v1")
    e(f"v_add_u32 v{vWL2}, 4096, v{vWL}")
    for t in range(4):
        e(f"s_add_u32 s{sT0}, s3, {t}")
        e(f"s_and_b32 s{sT0}, s{sT0}, 3")
        e(f"s_lshl_b32 s{sT1}, s{sT0}, 10")
        e(f"v_add_u32 v{vHL+t}, s{sT1}, v{vWL}")
        if t > 0:
            e(f"s_mul_i32 s{sT1}, s{sT0}, 15360")
            e(f"s_add_u32 s{sT1}, s{sT1}, {(t-1)*5120}")
            e(f"v_add_u32 v{vRW+t-1}, s{sT1}, v{vWL}")
    e(f"s_mul_i32 s{sT1}, s3, 15360")
    e(f"v_add_u32 v{vRR}, s{sT1}, v{vWL}")
    e("v_and_b32 v2, 15, v1")
    e("v_mul_u32_u24 v2, 1280, v2")
    e("v_lshrrev_b32 v3, 4, v1")
    e(f"v_lshl_add_u32 v{vOS}, v3, 3, v2")
    e(f"v_min_u32 v2, 13, v1")
    e(f"s_lshr_b32 s{sT0}, s{sT64}, 1")
    e(f"s_lshl_b32 s{sT0}, s{sT0}, 7")
    e(f"s_add_u32 s{sT0}, s{sT0}, {FLAG_OFF}")
    e(f"v_lshl_add_u32 v{vFL}, v2, 3, s{sT0}")
    e(f"v_min_u32 v2, 26, v1")
    e(f"v_lshlrev_b32 v2, 3, v2")
    e(f"v_add_u32 v{vFW}, {W2F_OFF}, v2")
    e(f"v_lshlrev_b32 v{vZ}, 24, v1")


wq = [(i, dt) for i in range(14) for dt in range(5)]
wpos = [0]


def w_loads(n):
    sc = " sc1" if A.fused else ""
    for _ in range(n):
        if wpos[0] >= len(wq):
            return
        i, dt = wq[wpos[0]]
        wpos[0] += 1
        if dt == 0 and i > 0:
            e(f"s_add_u32 s{sP2W}, s{sP2W}, 163840")
            if i == 13:
                e(f"s_cmp_ge_u32 s3, 2")
                e(f"s_cselect_b32 s{sP2W}, {BIG}, s{sP2W}")
        if dt < 4:
            e.vmem(f"buffer_load_dwordx4 {wreg(i,dt)}, v{vWL}, {S(SWS)}, s{sP2W} offen offset:{dt*1024}{sc}", ("W", i))
        else:
            e.vmem(f"buffer_load_dwordx4 {wreg(i,dt)}, v{vWL2}, {S(SWS)}, s{sP2W} offen{sc}", ("W", i))


def h_loads(i):
    sc = " sc1" if (A.fused and A.hsc1) else ""
    if i > 0:
        e(f"s_add_u32 s{sP2H}, s{sP2H}, 16384")
        if i == 13:
            e(f"s_cmp_ge_u32 s3, 2")
            e(f"s_cselect_b32 s{sP2H}, {BIG}, s{sP2H}")
    for t in range(4):
        b = HR + (i % NHR) * 16 + t * 4
        e.vmem(f"buffer_load_dwordx4 {V(b)}, v{vHL+t}, {S(SWS)}, s{sP2H} offen{sc}", ("H", i, t))


def spin(name, voff, reg, srdb, first_issued, cmp_nonce=True, nafter=0):
    e.vmwait(lambda t: t == ("P", name))
    e(f"s_mov_b32 s{sCNT}, 0")
    e.label(f"L_spin_{name}")
    if cmp_nonce:
        e(f"v_cmp_eq_u64 vcc, s[{sNON}:{sNON+1}], v[{reg}:{reg+1}]")
    else:
        e(f"v_cmp_ne_u64 vcc, 0, v[{reg}:{reg+1}]")
    e(f"s_add_u32 s{sCNT}, s{sCNT}, 1")
    e("s_cmp_eq_u64 vcc, exec")
    e(f"s_cbranch_scc1 L_ok_{name}")
    e(f"s_cmp_ge_u32 s{sCNT}, {SPIN}")
    e(f"s_cbranch_scc1 L_ok_{name}")
    e("s_sleep 1")
    e(f"buffer_load_dwordx2 v[{reg}:{reg+1}], v{voff}, {S(srdb)}, 0 offen sc1")
    e("s_waitcnt vmcnt(0)")
    e(f"s_branch L_spin_{name}")
    e.label(f"L_ok_{name}")


def poll_issue(name, voff, reg, srdb):
    e.vmem(f"buffer_load_dwordx2 v[{reg}:{reg+1}], v{voff}, {S(srdb)}, 0 offen sc1", ("P", name))


def get_nonce(tag):
    spin(tag, 9, 4, SDBG, True, cmp_nonce=False)
    e(f"v_readfirstlane_b32 s{sNON}, v4")
    e(f"v_readfirstlane_b32 s{sNON+1}, v5")
    e("s_nop 1")


def phase2_main():
    for i in range(NHR):
        h_loads(i)
    w_loads(100)
    e.ts()
    for i in range(14):
        for t in range(4):
            e.vmwait(lambda g: g == ("H", i, t) or g == ("W", i))
            hb = HR + (i % NHR) * 16 + t * 4
            for dt in range(5):
                d = ACC2 + (t * 5 + dt) * 4
                c = "0" if i == 0 else V(d)
                e(f"v_mfma_f32_16x16x32_bf16 {V(d)}, {wreg(i,dt)}, {V(hb)}, {c}")
        if i + NHR < 14:
            h_loads(i + NHR)
    e.ts()
    e("s_nop 7")
    for t in range(1, 4):
        for dt in range(5):
            d = ACC2 + (t * 5 + dt) * 4
            e(f"ds_write_b128 v{vRW+t-1}, {V(d)} offset:{dt*1024}")
    e("s_waitcnt lgkmcnt(0)")
    e("s_barrier")
    R = HR
    for j in range(3):
        for dt in range(5):
            e(f"ds_read_b128 {V(R+(j*5+dt)*4)}, v{vRR} offset:{j*5120+dt*1024}")
    e(f"s_mul_i32 s{sT0}, s{sT64}, 64")
    e(f"s_lshl_b32 s{sT1}, s3, 4")
    e(f"s_add_u32 s{sT0}, s{sT0}, s{sT1}")
    e(f"s_mul_i32 s{sT0}, s{sT0}, 1280")
    e(f"s_mul_i32 s{sT1}, s{sD80}, 160")
    e(f"s_add_u32 s{sT0}, s{sT0}, s{sT1}")
    for j in range(3):
        e(f"s_waitcnt lgkmcnt({10-5*j})")
        for dt in range(5):
            for r in range(0, 4, 2):
                d = ACC2 + dt * 4 + r
                s_ = R + (j * 5 + dt) * 4 + r
                e(f"v_pk_add_f32 v[{d}:{d+1}], v[{d}:{d+1}], v[{s_}:{s_+1}]")
    for dt in range(5):
        d = ACC2 + dt * 4
        o = 2 + 0
        e(f"v_cvt_pk_bf16_f32 v{R+2*dt}, v{d}, v{d+1}")
        e(f"v_cvt_pk_bf16_f32 v{R+2*dt+1}, v{d+2}, v{d+3}")
        e.vmem(f"buffer_store_dwordx2 v[{R+2*dt}:{R+2*dt+1}], v{vOS}, {S(SOUT)}, s{sT0} offen offset:{dt*32}", ("O",))
    e.ts()


def diag_dump():
    if not A.diag:
        return
    n = e.nts
    e(f"s_lshl_b32 s{sT0}, s2, 2")
    e(f"s_add_u32 s{sT0}, s{sT0}, s3")
    e(f"s_lshl_b32 s{sT0}, s{sT0}, 7")
    e(f"s_add_u32 s{sT0}, s{sT0}, {DIAG_OFF}")
    e(f"v_lshlrev_b32 v9, 24, v1")
    for k in range(16):
        e(f"v_mov_b32 v2, s{64+2*k}")
        e(f"v_mov_b32 v3, s{65+2*k}")
        e(f"buffer_store_dwordx2 v[2:3], v9, {S(SWS)}, s{sT0} offen offset:{8*k}")
        e("s_nop 1")


def dma(it, part):
    st = it % NS
    if part == 0:
        e(f"s_add_u32 m0, s{sLDSW}, {st*32768}")
        if it > 0:
            e(f"s_add_u32 s{sXO}, s{sXO}, 128")
        else:
            e("s_nop 0")
    if part == 4:
        e(f"s_add_u32 m0, s{sLDSW}, {st*32768+16384}")
        if it > 0:
            e(f"s_add_u32 s{sWO}, s{sWO}, {64*3456}")
        else:
            e("s_nop 0")
    if part < 4:
        e.vmem(f"buffer_load_dwordx4 v{vX+part}, {S(SX)}, s{sXO} offen offset:{1024*part} lds", ("D", it))
    else:
        e.vmem(f"buffer_load_dwordx4 v{vW+part-4}, {S(SW1)}, s{sWO} offen offset:{1024*(part-4)} lds", ("D", it))


def frag_reads(n, half):
    it, ks = divmod(n, 4)
    st = it % NS
    j, so = st >> 1, (st & 1) * 32768
    f = FR[n & 1]
    ft = tt = half
    for q in range(2):
        e(f"ds_read_b64_tr_b16 v[{f+ft*4+2*q}:{f+ft*4+2*q+1}], v{vAa+j*2+ft} offset:{so+ks*4096+q*1024}")
    e(f"ds_read_b128 {V(f+8+tt*4)}, v{vB+j*4+ks} offset:{so+tt*4096}")


def mfma1(n, ft, tt):
    f = FR[n & 1]
    a = acc(ft, tt)
    c = "0" if n == 0 else V(a, 16)
    e(f"v_mfma_f32_32x32x16_bf16 {V(a,16)}, {V(f+ft*4)}, {V(f+8+tt*4)}, {c}")


def gemm_role():
    e(f"s_mul_i32 s{sT0}, s{sSLOT}, 37")
    e(f"s_lshr_b32 s{sT0}, s{sT0}, 8")
    e(f"s_mul_i32 s{sT1}, s{sT0}, 7")
    e(f"s_sub_u32 s{sT1}, s{sSLOT}, s{sT1}")
    e(f"s_lshr_b32 s{sRB}, s{sXCD}, 1")
    e(f"s_lshl_b32 s{sRB}, s{sRB}, 2")
    e(f"s_add_u32 s{sRB}, s{sRB}, s{sT0}")
    e(f"s_and_b32 s{sNT}, s{sXCD}, 1")
    e(f"s_mul_i32 s{sNT}, s{sNT}, 7")
    e(f"s_add_u32 s{sNT}, s{sNT}, s{sT1}")
    e(f"s_lshl_b32 s{sLDSW}, s3, 12")
    e(f"s_lshl_b32 s{sT0}, s{sRB}, 2")
    e(f"s_add_u32 s{sT0}, s{sT0}, s3")
    e(f"s_mul_i32 s{sXO}, s{sT0}, {32*1280}")
    e(f"s_mul_i32 s{sWO}, s3, {16*3456}")
    e(f"s_lshl_b32 s{sT0}, s{sNT}, 8")
    e(f"s_add_u32 s{sWO}, s{sWO}, s{sT0}")
    e("v_lshrrev_b32 v2, 3, v1")
    e("v_mul_u32_u24 v2, 1280, v2")
    e("v_and_b32 v3, 7, v1")
    e("v_lshrrev_b32 v4, 4, v1")
    e("v_xor_b32 v5, v3, v4")
    e("v_xor_b32 v6, 4, v5")
    e("v_lshl_add_u32 v5, v5, 4, v2")
    e("v_lshl_add_u32 v6, v6, 4, v2")
    for i in range(4):
        e(f"v_add_u32 v{vX+i}, {i*(10240-1024)}, v{5+(i&1)}")
    e("v_mul_u32_u24 v2, 3456, v4")
    e("v_and_b32 v3, 15, v1")
    e("v_lshlrev_b32 v5, 2, v4")
    e("v_xor_b32 v3, v3, v5")
    e("v_lshl_add_u32 v2, v3, 4, v2")
    for i in range(4):
        e(f"v_add_u32 v{vW+i}, {i*(13824-1024)}, v2")
    e("s_waitcnt lgkmcnt(0)")
    srd(SX, 4, 2048 * 1280)
    srd(SW1, 6, 640 * 3456)
    for it in range(NS):
        for p in range(8):
            dma(it, p)
    srd(SWS, 14, WS_SIZE)
    srd(SOUT, 10, 2048 * 1280)
    srd(SDBG, 12, 256)
    if A.pf:
        code_prefetch()
    if A.fused:
        e("s_or_b32 s62, s2, s3")
        e("s_cmp_lg_u32 s62, 0")
        e("s_cbranch_scc1 L_nononce")
        e(f"s_memrealtime s[{sNON}:{sNON+1}]")
        e("s_waitcnt lgkmcnt(0)")
        e(f"s_or_b32 s{sNON+1}, s{sNON+1}, 0x40000000")
        e(f"v_mov_b32 v2, s{sNON}")
        e(f"v_mov_b32 v3, s{sNON+1}")
        e("v_lshlrev_b32 v4, 24, v1")
        e(f"buffer_store_dwordx2 v[2:3], v4, {S(SDBG)}, 0 offen sc1")
        e.label("L_nononce")
    e("v_and_b32 v2, 31, v1")
    e("v_lshrrev_b32 v3, 5, v1")
    e("v_bfe_u32 v4, v1, 1, 3")
    e(f"s_and_b32 s{sT0}, s3, 1")
    e(f"s_lshr_b32 s{sT1}, s3, 1")
    e(f"s_lshl_b32 s{sT2}, s{sT0}, 13")
    e(f"v_lshl_add_u32 v2, v2, 7, s{sT2}")
    for ks in range(4):
        e(f"v_or_b32 v5, {2*ks}, v3")
        e("v_xor_b32 v5, v5, v4")
        e(f"v_lshl_add_u32 v{vB+ks}, v5, 4, v2")
    nj = (NS + 1) // 2
    for j in range(1, nj):
        for ks in range(4):
            e(f"v_add_u32 v{vB+j*4+ks}, {j*65536}, v{vB+ks}")
    e("v_bfe_u32 v2, v1, 2, 2")
    e("v_lshl_add_u32 v5, v3, 3, v2")
    e("v_lshlrev_b32 v5, 8, v5")
    e("v_and_b32 v6, 1, v1")
    e("v_lshl_add_u32 v5, v6, 3, v5")
    e("v_add_u32 v5, 16384, v5")
    e("v_bfe_u32 v6, v1, 4, 1")
    e("v_bfe_u32 v7, v1, 1, 1")
    e("v_lshl_add_u32 v6, v6, 1, v7")
    e(f"s_lshl_b32 s{sT2}, s{sT1}, 3")
    e(f"v_or_b32 v6, s{sT2}, v6")
    e("v_lshlrev_b32 v2, 2, v2")
    for ft in range(2):
        e(f"v_or_b32 v7, {4*ft}, v6")
        e("v_xor_b32 v7, v7, v2")
        e(f"v_lshl_add_u32 v{vAa+ft}, v7, 4, v5")
    for j in range(1, nj):
        for ft in range(2):
            e(f"v_add_u32 v{vAa+j*2+ft}, {j*65536}, v{vAa+ft}")
    e("v_bfe_u32 v5, v1, 4, 1")
    e("v_and_b32 v6, 15, v1")
    e("v_lshl_add_u32 v6, v3, 4, v6")
    e("v_lshlrev_b32 v6, 4, v6")
    e(f"v_lshl_add_u32 v{vHS}, v5, 10, v6")
    e(f"s_lshl_b32 s{sT2}, s{sRB}, 1")
    e(f"s_add_u32 s{sT2}, s{sT2}, s{sT0}")
    e(f"s_mul_i32 s{sT2}, s{sT2}, 54")
    e(f"s_lshl_b32 s{sT3}, s{sNT}, 2")
    e(f"s_lshl_b32 s{sT1}, s{sT1}, 1")
    e(f"s_add_u32 s{sT3}, s{sT3}, s{sT1}")
    e(f"s_add_u32 s{sT2}, s{sT2}, s{sT3}")
    e(f"s_lshl_b32 s{sH0}, s{sT2}, 12")
    e(f"s_cmp_ge_u32 s{sT3}, 54")
    e(f"s_cselect_b32 s{sH0}, {BIG}, s{sH0}")
    e(f"s_add_u32 s{sH1}, s{sH0}, 4096")
    e("v_mov_b32 v9, 0")
    e.ts()
    e.vmwait(lambda t: t == ("D", 0))
    e("s_barrier")
    e.ts()
    frag_reads(0, 0)
    frag_reads(0, 1)
    pend = []
    for it in range(NIT):
        for ks in range(4):
            n = it * 4 + ks
            e("s_waitcnt lgkmcnt(0)")
            mfma1(n, 0, 0)
            if ks == 3 and it < NIT - 1:
                e.vmwait(lambda t: t == ("D", it + 1))
                e("s_barrier")
                if it + NS < NIT:
                    pend += [(it + NS, p) for p in range(8)]
            if n + 1 < 4 * NIT:
                frag_reads(n + 1, 0)
            mfma1(n, 1, 0)
            if n + 1 < 4 * NIT:
                frag_reads(n + 1, 1)
            mfma1(n, 0, 1)
            if pend:
                dma(*pend.pop(0))
            if A.fused and n == 4 * NIT - 4:
                poll_issue("n1", 9, 4, SDBG)
            mfma1(n, 1, 1)
            if pend:
                dma(*pend.pop(0))
    assert not pend
    e.ts()


def gemm_epilogue_stores():
    sc = " sc1" if A.fused else ""
    k = 0
    for (ft, tt) in [(0, 0), (1, 0), (0, 1), (1, 1)]:
        a = acc(ft, tt)
        h = HOUT + k * 8
        k += 1
        for p in range(8):
            e(f"v_cvt_pk_bf16_f32 v{h+p}, v{a+2*p}, v{a+2*p+1}")
        for p in range(8):
            e(f"v_pk_max_i16 v{h+p}, v{h+p}, 0")
        for c in range(2):
            e.vmem(f"buffer_store_dwordx4 {V(h+4*c)}, v{vHS}, {S(SWS)}, s{sH0+ft} offen offset:{tt*2048+c*512}{sc}", ("S",))


def repack_role():
    sRI, sG, sL = sRB, sNT, sLDSW
    e(f"s_sub_u32 s{sRI}, s{sSLOT}, 28")
    e(f"s_lshl_b32 s{sRI}, s{sRI}, 3")
    e(f"s_add_u32 s{sRI}, s{sRI}, s{sXCD}")
    e(f"s_lshl_b32 s{sG}, s{sRI}, 3")
    e(f"s_add_u32 s{sG}, s{sG}, s3")
    e(f"s_mul_i32 s{sG}, s{sG}, {8*1280}")
    e(f"s_cmp_ge_u32 s{sRI}, 27")
    e(f"s_cselect_b32 s{sG}, {BIG}, s{sG}")
    e(f"s_mul_i32 s{sL}, s3, 10240")
    e("v_lshrrev_b32 v4, 4, v1")
    e("v_mul_u32_u24 v2, 1280, v4")
    e("v_and_b32 v3, 15, v1")
    e("v_lshlrev_b32 v5, 1, v4")
    e("v_xor_b32 v3, v3, v5")
    e("v_xor_b32 v6, 8, v3")
    e("v_lshl_add_u32 v10, v3, 4, v2")
    e("v_lshl_add_u32 v11, v6, 4, v2")
    e("s_waitcnt lgkmcnt(0)")
    srd(SW2, 8, 1728 * 1280)
    for k2 in range(2):
        for ee in range(2):
            for cb in range(5):
                e(f"s_add_u32 m0, s{sL}, {k2*40960+ee*5120+cb*1024}")
                e(f"s_add_u32 s{sT0}, s{sG}, {(32*k2+4*ee)*1280+cb*256}")
                e.vmem(f"buffer_load_dwordx4 v{10+ee}, {S(SW2)}, s{sT0} offen lds", ("R",))
    srd(SWS, 14, WS_SIZE)
    srd(SOUT, 10, 2048 * 1280)
    srd(SDBG, 12, 256)
    if A.pf:
        code_prefetch()
    e("v_mov_b32 v9, 0")
    e("v_lshrrev_b32 v2, 5, v1")
    e("v_bfe_u32 v3, v1, 4, 1")
    e("v_lshl_add_u32 v2, v2, 2, v3")
    e("v_mul_u32_u24 v2, 5120, v2")
    e("v_bfe_u32 v4, v1, 2, 2")
    e("v_lshl_add_u32 v2, v4, 8, v2")
    e("v_and_b32 v5, 1, v1")
    e("v_lshl_add_u32 v2, v5, 3, v2")
    e("v_lshl_add_u32 v3, v3, 2, v4")
    e("v_lshlrev_b32 v3, 1, v3")
    e("v_bfe_u32 v5, v1, 1, 1")
    e(f"s_lshl_b32 s{sT0}, s3, 2")
    e(f"v_or_b32 v5, s{sT0}, v5")
    for ee in range(2):
        e(f"v_or_b32 v6, {2*ee}, v5")
        e("v_xor_b32 v6, v6, v3")
        e(f"v_lshl_add_u32 v{12+ee}, v6, 4, v2")
    e("v_lshlrev_b32 v14, 4, v1")
    e(f"s_mul_i32 s{sG}, s{sRI}, 81920")
    e(f"s_lshl_b32 s{sT0}, s3, 11")
    e(f"s_add_u32 s{sG}, s{sG}, s{sT0}")
    e(f"s_add_u32 s{sG}, s{sG}, {W2P_OFF}")
    e(f"s_cmp_ge_u32 s{sRI}, 27")
    e(f"s_cselect_b32 s{sG}, {BIG}, s{sG}")
    e.ts()
    e.vmwait(lambda t: t == ("R",))
    e("s_barrier")
    e.ts()
    if A.fused:
        poll_issue("n2", 9, 4, SDBG)
    sc = " sc1" if A.fused else ""
    R = 24
    k = 0
    blks = []
    for k2 in range(2):
        for a in range(5):
            for ee in range(2):
                b = R + k * 4
                k += 1
                for q in range(2):
                    e(f"ds_read_b64_tr_b16 v[{b+2*q}:{b+2*q+1}], v{12+ee} offset:{k2*40960+q*10240+a*1024}")
                blks.append((k2, a, ee, b))
    for idx, (k2, a, ee, b) in enumerate(blks):
        if idx % 4 == 0:
            e(f"s_waitcnt lgkmcnt({min(15, 2*(len(blks)-idx-4))})")
        if ee == 0:
            e(f"s_add_u32 s{sT0}, s{sG}, {k2*40960+a*8192}")
        e.vmem(f"buffer_store_dwordx4 {V(b)}, v14, {S(SWS)}, s{sT0} offen offset:{ee*1024}{sc}", ("S",))
    e.ts()


def kernel_begin(name):
    e.l.append(f".globl {name}\n.p2align 8\n.type {name},@function\n{name}:")


def kdesc(name):
    return f""".amdhsa_kernel {name}
  .amdhsa_next_free_vgpr 512
  .amdhsa_next_free_sgpr 102
  .amdhsa_accum_offset 256
  .amdhsa_group_segment_fixed_size 0
  .amdhsa_kernarg_size 48
  .amdhsa_user_sgpr_count 2
  .amdhsa_user_sgpr_kernarg_segment_ptr 1
  .amdhsa_system_sgpr_workgroup_id_x 1
.end_amdhsa_kernel"""


LDS = max(NS * 32768, 81920)
hdr = []
if A.fused:
    hdr.append(f"; @launch grid=(256,1,1) block=(256,1,1) lds={LDS}")
else:
    hdr.append(f"; @launch kernel=ph1_kernel grid=(256,1,1) block=(256,1,1) lds={LDS}")
    hdr.append(f"; @launch kernel={KN} grid=(256,1,1) block=(256,1,1) lds=61440")
hdr.append('.amdgcn_target "amdgcn-amd-amdhsa--gfx950"')
hdr.append(".text")

if not A.fused:
    kernel_begin("ph1_kernel")
    common_head("L_end1")
    e.ts()
    e(f"s_cmp_ge_u32 s{sSLOT}, 28")
    e("s_cbranch_scc1 L_repack")
    gemm_role()
    e("s_nop 7\ns_nop 1")
    gemm_epilogue_stores()
    e.ts()
    diag_dump()
    e("s_endpgm")
    e.label("L_repack")
    e.vm = []
    e.nts = 1
    repack_role()
    diag_dump()
    e.label("L_end1")
    e.label("L_codeend")
    e("s_endpgm")
    e.vm = []
    e.nts = 0
    kernel_begin(KN)
    common_head("L_end2", pc=False)
    p2_setup()
    e("s_waitcnt lgkmcnt(0)")
    srd(SWS, 14, WS_SIZE)
    srd(SOUT, 10, 2048 * 1280)
    w_loads(30)
    A.diag = 0
    phase2_main()
    e.label("L_end2")
    e("s_endpgm")
    names = ["ph1_kernel", KN]
else:
    kernel_begin(KN)
    common_head("L_end")
    e.ts()
    e(f"s_cmp_ge_u32 s{sSLOT}, 28")
    e("s_cbranch_scc1 L_repack")
    gemm_role()
    p2_setup()
    poll_issue("w2a", vFW, 6, SWS)
    get_nonce("n1")
    gemm_epilogue_stores()
    spin("w2a", vFW, 6, SWS, True)
    nw_mid = 70 - A.wlate
    if not A.safe:
        w_loads(nw_mid)
    e.vmwait(lambda t: t == ("S",))
    e("s_barrier")
    e(f"s_lshl_b32 s{sT0}, s{sRB}, 7")
    e(f"s_lshl_b32 s{sT1}, s{sNT}, 3")
    e(f"s_add_u32 s{sT0}, s{sT0}, s{sT1}")
    e(f"s_add_u32 s{sT0}, s{sT0}, {FLAG_OFF}")
    e(f"s_cmp_lg_u32 s3, 0")
    e(f"s_cselect_b32 s{sT0}, {BIG}, s{sT0}")
    e(f"v_mov_b32 v2, s{sNON}")
    e(f"v_mov_b32 v3, s{sNON+1}")
    e.vmem(f"buffer_store_dwordx2 v[2:3], v{vZ}, {S(SWS)}, s{sT0} offen sc1", ("F",))
    if A.safe:
        w_loads(nw_mid)
    e.ts()
    nts_join = e.nts
    vm_join = [t for t in e.vm if t[0] == "W"]
    assert len(vm_join) == wpos[0]
    wpos_join = wpos[0]
    e("s_branch L_join")
    e.label("L_repack")
    e.vm = []
    e.nts = 1
    wpos[0] = 0
    repack_role()
    p2_setup()
    get_nonce("n2")
    e.vmwait(lambda t: t == ("S",))
    e("s_barrier")
    e(f"s_lshl_b32 s{sT0}, s{sRB}, 3")
    e(f"s_add_u32 s{sT0}, s{sT0}, {W2F_OFF}")
    e(f"s_cmp_ge_u32 s{sRB}, 27")
    e(f"s_cselect_b32 s{sT0}, {BIG}, s{sT0}")
    e(f"s_cmp_lg_u32 s3, 0")
    e(f"s_cselect_b32 s{sT0}, {BIG}, s{sT0}")
    e(f"v_mov_b32 v2, s{sNON}")
    e(f"v_mov_b32 v3, s{sNON+1}")
    e.vmem(f"buffer_store_dwordx2 v[2:3], v{vZ}, {S(SWS)}, s{sT0} offen sc1", ("F",))
    poll_issue("w2b", vFW, 6, SWS)
    spin("w2b", vFW, 6, SWS, True)
    w_loads(wpos_join)
    while e.nts < nts_join:
        e.ts()
    e.vm = vm_join
    e.label("L_join")
    poll_issue("h", vFL, 6, SWS)
    w_loads(A.wlate)
    spin("h", vFL, 6, SWS, True)
    e.ts()
    phase2_main()
    diag_dump()
    e.label("L_end")
    e.label("L_codeend")
    e("s_endpgm")
    names = [KN]

body = "\n".join(e.l)
ninst = sum(1 for x in e.l if x.startswith("    "))
est = ninst * 8
npf = (est + 8191) // 8192
pf = "\n".join(f"    s_min_u32 s{sT0}, s{sJ}, L_codeend-L_pc\n    s_load_dword s63, s[{sPC}:{sPC+1}], s{sT0}\n    s_add_u32 s{sJ}, s{sJ}, 8192" for k in range(npf))
body = body.replace("@@PF@@", pf)
out = "\n".join(hdr) + "\n" + body + "\n" + '.section .rodata,"a"\n'
for n in names:
    out += ".p2align 6\n" + kdesc(n) + "\n"
print(out)
```

```python
import sys, argparse
ap = argparse.ArgumentParser()
ap.add_argument("--diag", type=int, default=0)
ap.add_argument("--ns", type=int, default=5)
ap.add_argument("--pf", type=int, default=1)
ap.add_argument("--P", type=int, default=20)
ap.add_argument("--rot1", type=int, default=1)
ap.add_argument("--rot2", type=int, default=1)
ap.add_argument("--map1", type=int, default=214)
ap.add_argument("--nn0", type=int, default=32)
ap.add_argument("--nn", type=int, default=6)
ap.add_argument("--wpre", type=int, default=20)
ap.add_argument("--wlate", type=int, default=0)
ap.add_argument("--fn0", type=int, default=36)
ap.add_argument("--trl", type=int, default=0)
ap.add_argument("--wjoin", type=int, default=12)
ap.add_argument("--ssleep", type=int, default=8)
ap.add_argument("--spf", type=int, default=0)
ap.add_argument("--w2pf", type=int, default=1)
ap.add_argument("--pfn", type=int, default=12)
ap.add_argument("--tsm", type=int, default=0)
ap.add_argument("--hd", type=int, default=3)
ap.add_argument("--sleep", type=int, default=4)
A = ap.parse_args()

KN = "standalone__dense_activation_relu__prompt_kernel"
HP_OFF = 0
W2P_OFF = 0x700000
FLAG_OFF = 0xA00000
W2F_OFF = FLAG_OFF + 0x40000
DIAG_OFF = 0xB00000
WS_SIZE = 0xC00000
BIG = 0x40000000
NS = A.ns
NIT = 10
NN = A.nn
NP = 14 - NN
NU = (NP * 40 - 20 + 127) // 128
NUNIT = NP * 40 - 20
assert NS == 5 and A.hd < 6
SPIN = 20000


class Em:
    def __init__(s):
        s.l = []
        s.vm = []
        s.lg = []
        s.nts = 0

    def __call__(s, x):
        for y in x.split("\n"):
            s.l.append("    " + y)

    def label(s, x):
        s.l.append(x + ":")

    def vmem(s, x, tag):
        s(x)
        s.vm.append(tag)

    def vmwait(s, pred, also=""):
        idx = -1
        for i, t in enumerate(s.vm):
            if pred(t):
                idx = i
        if idx < 0:
            if also:
                s("s_waitcnt " + also)
            return
        n = min(len(s.vm) - 1 - idx, 63)
        s(f"s_waitcnt vmcnt({n}) {also}".rstrip())
        s.vm = s.vm[len(s.vm) - n:] if n else []

    def lds(s, x, tag):
        s(x)
        s.lg.append(tag)

    def lgwait(s, pred):
        idx = -1
        for i, t in enumerate(s.lg):
            if pred(t):
                idx = i
        if idx < 0:
            return
        n = min(len(s.lg) - 1 - idx, 15)
        s(f"s_waitcnt lgkmcnt({n})")
        s.lg = s.lg[len(s.lg) - n:] if n else []

    def clk(s, k):
        if A.diag:
            s(f"s_memtime s[{92+2*k}:{93+2*k}]")

    def ts(s):
        if A.diag:
            k = s.nts
            assert k < 14
            s(f"s_memrealtime s[{64+2*k}:{65+2*k}]")
            s.nts += 1


e = Em()

SX, SW1, SWS, SOUT, SDBG = 16, 20, 24, 28, 32
SW2 = 8
sKW, sKH, sPWB, sPHB = 36, 37, 38, 39
sXCD, sSLOT, sRB, sNT, sT0, sT1, sT2, sT3 = 40, 41, 42, 43, 44, 45, 46, 47
sLDSW, sXO, sWO, sH0, sH1 = 48, 49, 50, 51, 52
sT64, sD80, sP2W, sP2H, sCNT = 53, 54, 55, 56, 57
sNON = 58
sPC = 60
sJ = 62
sKB, sXB, sWB, sBADK, sHF, sOO = 96, 97, 98, 99, 100, 101


def srd(b, ptr, size):
    e(f"s_mov_b32 s{b}, s{ptr}")
    e(f"s_mov_b32 s{b+1}, s{ptr+1}")
    e(f"s_mov_b32 s{b+2}, {size}")
    e(f"s_mov_b32 s{b+3}, 0x00020000")


def S(b):
    return f"s[{b}:{b+3}]"


def V(b, n=4):
    return f"v[{b}:{b+n-1}]"


vX, vW = 208, 212
vB, vAa = 216, 228
FR = [24, 40]
ACC = 56
HOUT = 176
vHS = 8
ACC2 = 176
WX = 136
HR = 24
NHR = 6
vWL, vWL2 = 10, 11
vHL = 12
vRW = 16
vRR = 19
vOS = 20
vFL = 21
vFW = 22
vWD = 120
vWT = 125
sWM = 4
sPPB = 5
sKW2, sKH2 = 6, 7
vZ = 23


def acc(ft, tt):
    return ACC + (tt * 2 + ft) * 16


def wreg(i, dt):
    if i < 12:
        b = (i * 5 + dt) * 4
        return f"a[{b}:{b+3}]"
    b = WX + ((i - 12) * 5 + dt) * 4
    return f"v[{b}:{b+3}]"


def wreg2(i, dt, q):
    if i < 12:
        b = (i * 5 + dt) * 4 + 2 * q
        return f"a[{b}:{b+1}]"
    b = WX + ((i - 12) * 5 + dt) * 4 + 2 * q
    return f"v[{b}:{b+1}]"


def w2_prefetch():
    if not A.w2pf:
        return
    e(f"s_lshl_b32 s{sT0}, s{sSLOT}, 2")
    e(f"s_add_u32 s{sT0}, s{sT0}, s3")
    e(f"s_lshl_b32 s{sT0}, s{sT0}, 13")
    e(f"v_lshlrev_b32 v128, 7, v1")
    e.vmem(f"buffer_load_dword v129, v128, {S(SW2)}, s{sT0} offen", ("PF",))


def code_prefetch():
    e(f"s_lshl_b32 s{sJ}, s{sSLOT}, 2")
    e(f"s_add_u32 s{sJ}, s{sJ}, s3")
    e(f"s_lshl_b32 s{sJ}, s{sJ}, 6")
    e.l.append("@@PF@@")


def p2_setup():
    e(f"s_lshl_b32 s{sT64}, s{sXCD}, 2")
    e(f"s_lshr_b32 s{sT0}, s{sSLOT}, 3")
    e(f"s_add_u32 s{sT64}, s{sT64}, s{sT0}")
    e(f"s_and_b32 s{sD80}, s{sSLOT}, 7")
    e(f"s_mul_i32 s{sPWB}, s3, 40960")
    e(f"s_mul_i32 s{sT0}, s{sD80}, 160")
    e(f"s_add_u32 s{sPWB}, s{sPWB}, s{sT0}")
    e(f"s_mul_i32 s{sWM}, s3, 5120")
    e(f"s_mul_i32 s{sPPB}, s3, 40960")
    e(f"s_mul_i32 s{sT0}, s{sD80}, 5120")
    e(f"s_add_u32 s{sPPB}, s{sPPB}, s{sT0}")
    e(f"s_add_u32 s{sPPB}, s{sPPB}, {W2P_OFF}")
    e(f"s_mul_i32 s{sPHB}, s{sT64}, 54")
    e(f"s_add_u32 s{sPHB}, s{sPHB}, s3")
    e(f"s_lshl_b32 s{sPHB}, s{sPHB}, 12")
    e(f"s_cmp_ge_u32 s3, 2")
    e(f"s_cselect_b32 s{sBADK}, {NP-1}, 99")
    if A.rot2:
        e(f"s_and_b32 s{sT0}, s{sT64}, 3")
        e(f"s_lshl_b32 s{sT0}, s{sT0}, 1")
        e(f"s_add_u32 s{sT0}, s{sT0}, s{sD80}")
        e(f"s_mov_b32 s{sKW}, s{sT0}")
        for _ in range(13 // NN):
            e(f"s_cmp_ge_u32 s{sKW}, {NN}")
            e(f"s_cselect_b32 s{sT1}, {NN}, 0")
            e(f"s_sub_u32 s{sKW}, s{sKW}, s{sT1}")
        e(f"s_mov_b32 s{sKW2}, s{sT0}")
        for _ in range(13 // NP):
            e(f"s_cmp_ge_u32 s{sKW2}, {NP}")
            e(f"s_cselect_b32 s{sT1}, {NP}, 0")
            e(f"s_sub_u32 s{sKW2}, s{sKW2}, s{sT1}")
    else:
        e(f"s_mov_b32 s{sKW}, {NN-1}")
        e(f"s_mov_b32 s{sKW2}, {NP-1}")
    e(f"s_mov_b32 s{sKH}, s{sKW}")
    e(f"s_mov_b32 s{sKH2}, s{sKW2}")
    e(f"v_lshlrev_b32 v{vWL}, 4, v1")
    e(f"v_add_u32 v{vWL2}, 4096, v{vWL}")
    for t in range(4):
        e(f"s_add_u32 s{sT0}, s3, {t}")
        e(f"s_and_b32 s{sT0}, s{sT0}, 3")
        e(f"s_lshl_b32 s{sT1}, s{sT0}, 10")
        e(f"v_add_u32 v{vHL+t}, s{sT1}, v{vWL}")
        if t > 0:
            e(f"s_mul_i32 s{sT1}, s{sT0}, 15360")
            e(f"s_add_u32 s{sT1}, s{sT1}, {(t-1)*5120}")
            e(f"v_add_u32 v{vRW+t-1}, s{sT1}, v{vWL}")
    e(f"s_mul_i32 s{sT1}, s3, 15360")
    e(f"v_add_u32 v{vRR}, s{sT1}, v{vWL}")
    e("v_and_b32 v2, 15, v1")
    e("v_mul_u32_u24 v2, 1280, v2")
    e("v_lshrrev_b32 v3, 4, v1")
    e(f"v_lshl_add_u32 v{vOS}, v3, 3, v2")
    e(f"s_lshl_b32 s{sT0}, s{sT64}, 2")
    e(f"s_add_u32 s{sT0}, s{sT0}, s3")
    e(f"s_mul_i32 s{sOO}, s{sT0}, {16*1280}")
    e(f"s_mul_i32 s{sT1}, s{sD80}, 160")
    e(f"s_add_u32 s{sOO}, s{sOO}, s{sT1}")
    e(f"v_min_u32 v2, 13, v1")
    e(f"s_lshr_b32 s{sT1}, s3, 1")
    e(f"v_lshl_add_u32 v2, v2, 1, s{sT1}")
    e(f"v_min_u32 v2, 26, v2")
    e(f"s_lshl_b32 s{sT0}, s{sT64}, 12")
    e(f"s_add_u32 s{sT0}, s{sT0}, {FLAG_OFF}")
    e(f"v_lshl_add_u32 v{vFL}, v2, 7, s{sT0}")
    e(f"v_min_u32 v2, {2*NP-1}, v1")
    e(f"v_lshrrev_b32 v3, 1, v2")
    e(f"v_lshl_add_u32 v3, v3, 2, s3")
    e(f"v_min_u32 v3, {4*NP-3}, v3")
    e(f"v_mul_u32_u24 v3, 10, v3")
    e(f"v_and_b32 v2, 1, v2")
    e(f"s_mul_i32 s{sT0}, s{sD80}, 5")
    e(f"s_lshr_b32 s{sT0}, s{sT0}, 2")
    e(f"v_add3_u32 v2, v2, v3, s{sT0}")
    e(f"v_lshlrev_b32 v2, 7, v2")
    e(f"v_add_u32 v{vFW}, {W2F_OFF}, v2")
    for j in range(5):
        e(f"v_add_u32 v2, {64*j}, v1")
        e(f"v_mul_u32_u24 v3, 205, v2")
        e(f"v_lshrrev_b32 v3, 11, v3")
        e(f"v_mul_u32_u24 v4, {1280-160}, v3")
        e(f"v_lshl_add_u32 v4, v2, 4, v4")
        if j in (1, 2, 3):
            e(f"v_subrev_u32 v{vWD+j}, {1024*j}, v4")
        elif j == 4:
            e(f"v_mov_b32 v{vWD+4}, v4")
        else:
            e(f"v_mov_b32 v{vWD}, v4")
    e("v_lshrrev_b32 v2, 5, v1")
    e("v_bfe_u32 v3, v1, 4, 1")
    e("v_bfe_u32 v4, v1, 2, 2")
    e("v_lshlrev_b32 v2, 4, v2")
    e("v_lshl_add_u32 v2, v3, 2, v2")
    e("v_add_u32 v2, v2, v4")
    e("v_mul_u32_u24 v2, 160, v2")
    e("v_and_b32 v3, 3, v1")
    e("v_lshl_add_u32 v2, v3, 3, v2")
    e(f"v_add_u32 v{vWT}, s{sWM}, v2")
    e(f"v_add_u32 v{vWT+1}, 61440, v{vWT}")
    e(f"v_add_u32 v{vWT+2}, 122880, v{vWT}")
    e(f"v_lshlrev_b32 v{vZ}, 24, v1")
    e("v_mov_b32 v9, 0")


wq = [(i, dt) for i in range(14) for dt in range(5)]
wpos = [0]


def adv(sk, so, sb, stride, mod, add=0, bad=False):
    e(f"s_add_u32 s{sk}, s{sk}, 1")
    e(f"s_cmp_eq_u32 s{sk}, {mod}")
    e(f"s_cselect_b32 s{sk}, 0, s{sk}")
    e(f"s_mul_i32 s{so}, s{sk}, {stride}")
    e(f"s_add_u32 s{so}, s{so}, s{sb}")
    if add:
        e(f"s_add_u32 s{so}, s{so}, {add}")
    if bad:
        e(f"s_cmp_eq_u32 s{sk}, s{sBADK}")
        e(f"s_cselect_b32 s{so}, {BIG}, s{so}")


trpos = [0]
ppos = [NN * 5]


def w_dma(n, lim=14):
    for _ in range(n):
        if wpos[0] >= NN * 5:
            return
        i, j = wq[wpos[0]]
        if i >= lim:
            return
        if j == 0:
            adv(sKW, sP2W, sPWB, 163840, NN)
            e(f"s_add_u32 m0, s{sWM}, {i*20480}")
            e("s_nop 0")
        if j == 4:
            e(f"s_add_u32 m0, s{sWM}, {i*20480+4096}")
            e("s_nop 0")
        wpos[0] += 1
        e.vmem(f"buffer_load_dwordx4 v{vWD+j}, {S(SW2)}, s{sP2W} offen offset:{1024*(j&3)} lds", ("W", i))


def w_tr(n):
    for _ in range(n):
        i, r = divmod(trpos[0], 10)
        if i >= NN:
            return
        assert wpos[0] >= (i + 1) * 5
        if r == 0:
            e.vmwait(lambda t: t == ("W", i))
        dt, q = divmod(r, 2)
        off = (i % 3) * 20480 + dt * 32 + q * 1280
        e.lds(f"ds_read_b64_tr_b16 {wreg2(i,dt,q)}, v{vWT+i//3} offset:{off}", ("T", i, dt))
        trpos[0] += 1


def w_loads(n):
    for _ in range(n):
        if ppos[0] >= 70:
            return
        i, dt = wq[ppos[0]]
        ppos[0] += 1
        if dt == 0:
            adv(sKW2, sP2W, sPPB, 163840, NP, bad=True)
        if dt < 4:
            e.vmem(f"buffer_load_dwordx4 {wreg(i,dt)}, v{vWL}, {S(SWS)}, s{sP2W} offen offset:{dt*1024} sc1", ("W", i))
        else:
            e.vmem(f"buffer_load_dwordx4 {wreg(i,dt)}, v{vWL2}, {S(SWS)}, s{sP2W} offen sc1", ("W", i))


def h_loads(i, tsel=None):
    for t in (range(4) if tsel is None else [tsel]):
        if t == 0:
            if i < NN:
                adv(sKH, sP2H, sPHB, 16384, NN)
            else:
                adv(sKH2, sP2H, sPHB, 16384, NP, add=NN * 16384, bad=True)
        b = HR + (i % NHR) * 16 + t * 4
        e.vmem(f"buffer_load_dwordx4 {V(b)}, v{vHL+t}, {S(SWS)}, s{sP2H} offen sc1", ("H", i, t))


def spin(name, voff, reg, srdb, cmp_nonce=True, slp=None):
    e.vmwait(lambda t: t == ("P", name))
    e(f"s_mov_b32 s{sCNT}, 0")
    e.label(f"L_spin_{name}")
    if cmp_nonce:
        e(f"v_cmp_eq_u64 vcc, s[{sNON}:{sNON+1}], v[{reg}:{reg+1}]")
    else:
        e(f"v_cmp_ne_u64 vcc, 0, v[{reg}:{reg+1}]")
    e(f"s_add_u32 s{sCNT}, s{sCNT}, 1")
    e("s_cmp_eq_u64 vcc, exec")
    e(f"s_cbranch_scc1 L_ok_{name}")
    e(f"s_cmp_ge_u32 s{sCNT}, {SPIN}")
    e(f"s_cbranch_scc1 L_ok_{name}")
    e(f"s_sleep {A.sleep if slp is None else slp}")
    e(f"buffer_load_dwordx2 v[{reg}:{reg+1}], v{voff}, {S(srdb)}, 0 offen sc1")
    e("s_waitcnt vmcnt(0)")
    e(f"s_branch L_spin_{name}")
    e.label(f"L_ok_{name}")


def poll_issue(name, voff, reg, srdb):
    e.vmem(f"buffer_load_dwordx2 v[{reg}:{reg+1}], v{voff}, {S(srdb)}, 0 offen sc1", ("P", name))


def get_nonce(tag, slp=None):
    spin(tag, 9, 4, SDBG, cmp_nonce=False, slp=slp)
    e(f"v_readfirstlane_b32 s{sNON}, v4")
    e(f"v_readfirstlane_b32 s{sNON+1}, v5")
    e("s_nop 1")


p2bar = []


def phase2_main():
    HD = A.hd
    for i in range(HD):
        h_loads(i)
    e.ts(); e.clk(0)
    for i in range(14):
        for t in range(4):
            e.vmwait(lambda g: g == ("H", i, t) or g == ("W", i))
            if t == 0:
                assert i >= NN or trpos[0] >= (i + 1) * 10
                assert ppos[0] >= (i + 1) * 5
                e.lgwait(lambda g: g[0] == "T" and g[1] == i)
            hb = HR + (i % NHR) * 16 + t * 4
            for dt in range(5):
                d = ACC2 + (t * 5 + dt) * 4
                c = "0" if i == 0 else V(d)
                e(f"v_mfma_f32_16x16x32_bf16 {V(d)}, {wreg(i,dt)}, {V(hb)}, {c}")
                if dt == 1 and i + HD < 14:
                    h_loads(i + HD, t)
                if dt >= 2:
                    w_tr(1)
                if dt == 3:
                    w_loads(1)
        if trpos[0] == NN * 10 and not p2bar:
            p2bar.append(1)
            e.lgwait(lambda g: g[0] == "T")
            e("s_barrier")
    assert ppos[0] == 70 and trpos[0] == NN * 10 and p2bar
    e.ts(); e.clk(1)
    e("s_nop 7")
    for t in range(1, 4):
        for dt in range(5):
            d = ACC2 + (t * 5 + dt) * 4
            e(f"ds_write_b128 v{vRW+t-1}, {V(d)} offset:{dt*1024}")
    e("s_waitcnt lgkmcnt(0)")
    e("s_barrier")
    R = HR
    for j in range(3):
        for dt in range(5):
            e(f"ds_read_b128 {V(R+(j*5+dt)*4)}, v{vRR} offset:{j*5120+dt*1024}")
    for j in range(3):
        e(f"s_waitcnt lgkmcnt({10-5*j})")
        for dt in range(5):
            for r in range(0, 4, 2):
                d = ACC2 + dt * 4 + r
                s_ = R + (j * 5 + dt) * 4 + r
                e(f"v_pk_add_f32 v[{d}:{d+1}], v[{d}:{d+1}], v[{s_}:{s_+1}]")
    for dt in range(5):
        d = ACC2 + dt * 4
        e(f"v_cvt_pk_bf16_f32 v{R+2*dt}, v{d}, v{d+1}")
        e(f"v_cvt_pk_bf16_f32 v{R+2*dt+1}, v{d+2}, v{d+3}")
        e.vmem(f"buffer_store_dwordx2 v[{R+2*dt}:{R+2*dt+1}], v{vOS}, {S(SOUT)}, s{sOO} offen offset:{dt*32}", ("O",))
    e.ts()


def diag_dump():
    if not A.diag:
        return
    e("s_waitcnt lgkmcnt(0)")
    e(f"s_lshl_b32 s{sT0}, s2, 2")
    e(f"s_add_u32 s{sT0}, s{sT0}, s3")
    e(f"s_lshl_b32 s{sT0}, s{sT0}, 8")
    e(f"s_add_u32 s{sT0}, s{sT0}, {DIAG_OFF}")
    for k in range(16):
        e(f"v_mov_b32 v2, s{64+2*k}")
        e(f"v_mov_b32 v3, s{65+2*k}")
        e(f"buffer_store_dwordx2 v[2:3], v{vZ}, {S(SWS)}, s{sT0} offen offset:{8*k}")
        e("s_nop 1")


def dma(it, part):
    st = it % NS
    if part == 0:
        e(f"s_add_u32 m0, s{sLDSW}, {st*32768}")
        if it > 0:
            e(f"s_add_u32 s{sKB}, s{sKB}, 1")
            e(f"s_cmp_eq_u32 s{sKB}, 10")
            e(f"s_cselect_b32 s{sKB}, 0, s{sKB}")
        e(f"s_lshl_b32 s{sXO}, s{sKB}, 7")
        e(f"s_add_u32 s{sXO}, s{sXO}, s{sXB}")
    if part == 4:
        e(f"s_add_u32 m0, s{sLDSW}, {st*32768+16384}")
        e(f"s_mul_i32 s{sWO}, s{sKB}, {64*3456}")
        e(f"s_add_u32 s{sWO}, s{sWO}, s{sWB}")
    if part < 4:
        e.vmem(f"buffer_load_dwordx4 v{vX+part}, {S(SX)}, s{sXO} offen offset:{1024*part} lds", ("D", it))
    else:
        e.vmem(f"buffer_load_dwordx4 v{vW+part-4}, {S(SW1)}, s{sWO} offen offset:{1024*(part-4)} lds", ("D", it))


def frag_reads(n, half):
    it, ks = divmod(n, 4)
    st = it % NS
    j, so = st >> 1, (st & 1) * 32768
    f = FR[n & 1]
    ft = tt = half
    for q in range(2):
        e.lds(f"ds_read_b64_tr_b16 v[{f+ft*4+2*q}:{f+ft*4+2*q+1}], v{vAa+j*2+ft} offset:{so+ks*4096+q*1024}", ("A", n, ft))
    e.lds(f"ds_read_b128 {V(f+8+tt*4)}, v{vB+j*4+ks} offset:{so+tt*4096}", ("B", n, tt))


def mfma1(n, ft, tt):
    f = FR[n & 1]
    a = acc(ft, tt)
    c = "0" if n == 0 else V(a, 16)
    e(f"v_mfma_f32_32x32x16_bf16 {V(a,16)}, {V(f+ft*4)}, {V(f+8+tt*4)}, {c}")


def gemm_role():
    if A.map1 == 47:
        e(f"s_mul_i32 s{sT0}, s{sSLOT}, 37")
        e(f"s_lshr_b32 s{sT0}, s{sT0}, 8")
        e(f"s_mul_i32 s{sT1}, s{sT0}, 7")
        e(f"s_sub_u32 s{sT1}, s{sSLOT}, s{sT1}")
        if A.rot1:
            e(f"s_mul_i32 s{sKB}, s{sT1}, 3")
            e(f"s_mul_i32 s{sT2}, s{sT0}, 5")
            e(f"s_lshr_b32 s{sT2}, s{sT2}, 1")
            e(f"s_add_u32 s{sKB}, s{sKB}, s{sT2}")
            e(f"s_lshr_b32 s{sT2}, s{sXCD}, 1")
            e(f"s_add_u32 s{sKB}, s{sKB}, s{sT2}")
            e(f"s_and_b32 s{sT2}, s{sXCD}, 1")
            e(f"s_add_u32 s{sKB}, s{sKB}, s{sT2}")
        e(f"s_lshr_b32 s{sRB}, s{sXCD}, 1")
        e(f"s_lshl_b32 s{sRB}, s{sRB}, 2")
        e(f"s_add_u32 s{sRB}, s{sRB}, s{sT0}")
        e(f"s_and_b32 s{sNT}, s{sXCD}, 1")
        e(f"s_mul_i32 s{sNT}, s{sNT}, 7")
        e(f"s_add_u32 s{sNT}, s{sNT}, s{sT1}")
    else:
        e(f"s_cmp_ge_u32 s{sSLOT}, 14")
        e(f"s_cselect_b32 s{sT0}, 1, 0")
        e(f"s_cselect_b32 s{sT1}, 14, 0")
        e(f"s_sub_u32 s{sNT}, s{sSLOT}, s{sT1}")
        e(f"s_lshl_b32 s{sRB}, s{sXCD}, 1")
        e(f"s_add_u32 s{sRB}, s{sRB}, s{sT0}")
        if A.rot1:
            e(f"s_mul_i32 s{sKB}, s{sNT}, 3")
            e(f"s_mul_i32 s{sT2}, s{sT0}, 5")
            e(f"s_add_u32 s{sKB}, s{sKB}, s{sT2}")
            e(f"s_add_u32 s{sKB}, s{sKB}, s{sXCD}")
    if A.rot1:
        e(f"s_mul_i32 s{sT2}, s{sKB}, 205")
        e(f"s_lshr_b32 s{sT2}, s{sT2}, 11")
        e(f"s_mul_i32 s{sT2}, s{sT2}, 10")
        e(f"s_sub_u32 s{sKB}, s{sKB}, s{sT2}")
    else:
        e(f"s_mov_b32 s{sKB}, 0")
    e(f"s_lshl_b32 s{sLDSW}, s3, 12")
    e(f"s_lshl_b32 s{sT0}, s{sRB}, 2")
    e(f"s_add_u32 s{sT0}, s{sT0}, s3")
    e(f"s_mul_i32 s{sXB}, s{sT0}, {32*1280}")
    e(f"s_mul_i32 s{sWB}, s3, {16*3456}")
    e(f"s_lshl_b32 s{sT0}, s{sNT}, 8")
    e(f"s_add_u32 s{sWB}, s{sWB}, s{sT0}")
    e("v_lshrrev_b32 v2, 3, v1")
    e("v_mul_u32_u24 v2, 1280, v2")
    e("v_and_b32 v3, 7, v1")
    e("v_lshrrev_b32 v4, 4, v1")
    e("v_xor_b32 v5, v3, v4")
    e("v_xor_b32 v6, 4, v5")
    e("v_lshl_add_u32 v5, v5, 4, v2")
    e("v_lshl_add_u32 v6, v6, 4, v2")
    for i in range(4):
        e(f"v_add_u32 v{vX+i}, {i*(10240-1024)}, v{5+(i&1)}")
    e("v_mul_u32_u24 v2, 3456, v4")
    e("v_and_b32 v3, 15, v1")
    e("v_lshlrev_b32 v5, 2, v4")
    e("v_xor_b32 v3, v3, v5")
    e("v_lshl_add_u32 v2, v3, 4, v2")
    for i in range(4):
        e(f"v_add_u32 v{vW+i}, {i*(13824-1024)}, v2")
    e("s_waitcnt lgkmcnt(0)")
    srd(SX, 4, 2048 * 1280)
    srd(SW1, 6, 640 * 3456)
    allq = [(it, p) for it in range(NIT) for p in range(8)]
    for _ in range(min(A.P, 10)):
        dma(*allq.pop(0))
    srd(SWS, 14, WS_SIZE)
    srd(SOUT, 10, 2048 * 1280)
    srd(SDBG, 12, 256)
    e(f"s_mov_b32 s10, {1728*1280}")
    e(f"s_mov_b32 s11, 0x00020000")
    if A.pf:
        code_prefetch()
    e("v_and_b32 v2, 31, v1")
    e("v_lshrrev_b32 v3, 5, v1")
    e("v_bfe_u32 v4, v1, 1, 3")
    e(f"s_and_b32 s{sT0}, s3, 1")
    e(f"s_lshr_b32 s{sT1}, s3, 1")
    e(f"s_lshl_b32 s{sT2}, s{sT0}, 13")
    e(f"v_lshl_add_u32 v2, v2, 7, s{sT2}")
    for ks in range(4):
        e(f"v_or_b32 v5, {2*ks}, v3")
        e("v_xor_b32 v5, v5, v4")
        e(f"v_lshl_add_u32 v{vB+ks}, v5, 4, v2")
    nj = (NS + 1) // 2
    for j in range(1, nj):
        for ks in range(4):
            e(f"v_add_u32 v{vB+j*4+ks}, {j*65536}, v{vB+ks}")
    e("v_bfe_u32 v2, v1, 2, 2")
    e("v_lshl_add_u32 v5, v3, 3, v2")
    e("v_lshlrev_b32 v5, 8, v5")
    e("v_and_b32 v6, 1, v1")
    e("v_lshl_add_u32 v5, v6, 3, v5")
    e("v_add_u32 v5, 16384, v5")
    e("v_bfe_u32 v6, v1, 4, 1")
    e("v_bfe_u32 v7, v1, 1, 1")
    e("v_lshl_add_u32 v6, v6, 1, v7")
    e(f"s_lshl_b32 s{sT2}, s{sT1}, 3")
    e(f"v_or_b32 v6, s{sT2}, v6")
    e("v_lshlrev_b32 v2, 2, v2")
    for ft in range(2):
        e(f"v_or_b32 v7, {4*ft}, v6")
        e("v_xor_b32 v7, v7, v2")
        e(f"v_lshl_add_u32 v{vAa+ft}, v7, 4, v5")
    for j in range(1, nj):
        for ft in range(2):
            e(f"v_add_u32 v{vAa+j*2+ft}, {j*65536}, v{vAa+ft}")
    e("v_bfe_u32 v5, v1, 4, 1")
    e("v_and_b32 v6, 15, v1")
    e("v_lshl_add_u32 v6, v3, 4, v6")
    e("v_lshlrev_b32 v6, 4, v6")
    e(f"v_lshl_add_u32 v{vHS}, v5, 10, v6")
    e(f"s_lshl_b32 s{sT2}, s{sRB}, 1")
    e(f"s_add_u32 s{sT2}, s{sT2}, s{sT0}")
    e(f"s_lshl_b32 s{sT3}, s{sNT}, 1")
    e(f"s_add_u32 s{sT3}, s{sT3}, s{sT1}")
    e(f"s_lshl_b32 s{sHF}, s{sT2}, 5")
    e(f"s_add_u32 s{sHF}, s{sHF}, s{sT3}")
    e(f"s_lshl_b32 s{sHF}, s{sHF}, 7")
    e(f"s_add_u32 s{sHF}, s{sHF}, {FLAG_OFF}")
    e(f"s_mul_i32 s{sT2}, s{sT2}, 27")
    e(f"s_add_u32 s{sT2}, s{sT2}, s{sT3}")
    e(f"s_lshl_b32 s{sH0}, s{sT2}, 13")
    e(f"s_cmp_ge_u32 s{sT3}, 27")
    e(f"s_cselect_b32 s{sH0}, {BIG}, s{sH0}")
    e(f"s_cselect_b32 s{sHF}, {BIG}, s{sHF}")
    e(f"s_add_u32 s{sH1}, s{sH0}, 4096")
    p2_setup()
    for _ in range(A.P - min(A.P, 10)):
        dma(*allq.pop(0))
    if A.pfn < 0:
        w2_prefetch()
    e.ts()
    e.vmwait(lambda t: t == ("D", 0))
    e("s_barrier")
    e.ts()
    frag_reads(0, 0)
    frag_reads(0, 1)
    freed = [NS - 1]
    wlim = [0]
    WLIM = {5: 1, 6: 3, 7: 4, 8: 6}

    def filler():
        if allq:
            if allq[0][0] <= freed[0]:
                dma(*allq.pop(0))
        else:
            w_dma(1, wlim[0])
    for it in range(NIT):
        for ks in range(4):
            n = it * 4 + ks
            e.lgwait(lambda t: t in (("A", n, 0), ("B", n, 0)))
            mfma1(n, 0, 0)
            if ks == 3 and it < NIT - 1:
                e.lg = []
                e.vmwait(lambda t: t == ("D", it + 1), "lgkmcnt(0)")
                e("s_barrier")
                freed[0] = it + NS
                wlim[0] = WLIM.get(it, 0)
            if n + 1 < 4 * NIT:
                frag_reads(n + 1, 0)
            e.lgwait(lambda t: t == ("A", n, 1))
            mfma1(n, 1, 0)
            if n + 1 < 4 * NIT:
                frag_reads(n + 1, 1)
            e.lgwait(lambda t: t == ("B", n, 1))
            mfma1(n, 0, 1)
            filler()
            if n == A.pfn:
                w2_prefetch()
            if n == A.nn0 - 4:
                poll_issue("n1", 9, 4, SDBG)
            if n == A.nn0:
                get_nonce("n1")
            if n == A.fn0:
                poll_issue("w2a", vFW, 6, SWS)
            mfma1(n, 1, 1)
            filler()
        if it % 3 == 0:
            e.ts()
    assert not allq
    e("s_barrier")


def gemm_epilogue_stores():
    k = 0
    e("s_nop 6")
    for (ft, tt) in [(0, 0), (1, 0), (0, 1), (1, 1)]:
        a = acc(ft, tt)
        h = HOUT + k * 8
        k += 1
        for c in range(2):
            for p in range(4 * c, 4 * c + 4):
                e(f"v_cvt_pk_bf16_f32 v{h+p}, v{a+2*p}, v{a+2*p+1}")
            for p in range(4 * c, 4 * c + 4):
                e(f"v_pk_max_i16 v{h+p}, v{h+p}, 0")
            e.vmem(f"buffer_store_dwordx4 {V(h+4*c)}, v{vHS}, {S(SWS)}, s{sH0+ft} offen offset:{tt*2048+c*512} sc1", ("S",))


def repack_role():
    sWI, sL = sRB, sLDSW
    e(f"s_sub_u32 s{sWI}, s{sSLOT}, 28")
    e(f"s_lshl_b32 s{sWI}, s{sWI}, 3")
    e(f"s_add_u32 s{sWI}, s{sWI}, s{sXCD}")
    e(f"s_lshl_b32 s{sWI}, s{sWI}, 2")
    e(f"s_add_u32 s{sWI}, s{sWI}, s3")
    e(f"s_mul_i32 s{sL}, s3, {NU*4096}")
    e("v_lshrrev_b32 v2, 3, v1")
    e("v_mul_u32_u24 v2, 1280, v2")
    e("v_and_b32 v3, 7, v1")
    e("v_bfe_u32 v4, v1, 4, 2")
    e("v_lshlrev_b32 v4, 1, v4")
    e("v_xor_b32 v3, v3, v4")
    e("v_lshl_add_u32 v2, v3, 4, v2")
    for i in range(4):
        e(f"v_add_u32 v{vX+i}, {i*(10240-1024)}, v2")
    e("s_waitcnt lgkmcnt(0)")
    srd(SDBG, 12, 256)
    e("s_cmp_lg_u32 s{0}, 124".format(sWI))
    e("s_cbranch_scc1 L_nononce")
    e(f"s_memrealtime s[{sNON}:{sNON+1}]")
    e("s_waitcnt lgkmcnt(0)")
    e(f"s_or_b32 s{sNON+1}, s{sNON+1}, 0x40000000")
    e(f"v_mov_b32 v2, s{sNON}")
    e(f"v_mov_b32 v3, s{sNON+1}")
    e("v_lshlrev_b32 v4, 24, v1")
    e(f"buffer_store_dwordx2 v[2:3], v4, {S(SDBG)}, 0 offen sc1")
    e.label("L_nononce")
    srd(SOUT, 10, 2048 * 1280)
    e(f"s_mov_b32 s10, {1728*1280}")
    e(f"s_mov_b32 s11, 0x00020000")
    for k in range(NU):
        e(f"s_add_u32 s{sT0}, s{sWI}, {128*k}")
        e(f"s_mul_i32 s{sT1}, s{sT0}, 205")
        e(f"s_lshr_b32 s{sT1}, s{sT1}, 11")
        e(f"s_mul_i32 s{sT2}, s{sT1}, 10")
        e(f"s_sub_u32 s{sT2}, s{sT0}, s{sT2}")
        e(f"s_mul_i32 s{sT1}, s{sT1}, 40960")
        e(f"s_lshl_b32 s{sT2}, s{sT2}, 7")
        e(f"s_add_u32 s{sT1}, s{sT1}, s{sT2}")
        e(f"s_add_u32 s{sT1}, s{sT1}, {NN*163840}")
        e(f"s_cmp_ge_u32 s{sT0}, {NUNIT}")
        e(f"s_cselect_b32 s{sT1}, {BIG}, s{sT1}")
        e(f"s_add_u32 m0, s{sL}, {k*4096}")
        e("s_nop 0")
        for i in range(4):
            e.vmem(f"buffer_load_dwordx4 v{vX+i}, {S(SW2)}, s{sT1} offen offset:{1024*i} lds", ("R", k))
    w2_prefetch()
    srd(SWS, 14, WS_SIZE)
    if A.pf:
        code_prefetch()
    e("v_lshrrev_b32 v2, 5, v1")
    e("v_bfe_u32 v3, v1, 4, 1")
    e("v_bfe_u32 v4, v1, 2, 2")
    e("v_lshlrev_b32 v2, 4, v2")
    e("v_lshl_add_u32 v2, v3, 2, v2")
    e("v_add_u32 v2, v2, v4")
    e("v_lshlrev_b32 v2, 7, v2")
    e("v_and_b32 v5, 1, v1")
    e("v_lshl_add_u32 v2, v5, 3, v2")
    e(f"v_add_u32 v2, s{sL}, v2")
    e("v_lshrrev_b32 v4, 1, v4")
    e("v_lshl_add_u32 v3, v3, 1, v4")
    e("v_lshlrev_b32 v3, 1, v3")
    e("v_bfe_u32 v5, v1, 1, 1")
    for b in range(4):
        e(f"v_xor_b32 v6, {2*b}, v3")
        e("v_or_b32 v6, v6, v5")
        e(f"v_lshl_add_u32 v{vW+b}, v6, 4, v2")
    p2_setup()
    poll_issue("n2", 9, 4, SDBG)
    e.ts()
    R = 24
    for k in range(NU):
        e.vmwait(lambda t: t == ("R", k))
        for b in range(4):
            r = R + (k * 4 + b) * 4
            for q in range(2):
                e.lds(f"ds_read_b64_tr_b16 v[{r+2*q}:{r+2*q+1}], v{vW+b} offset:{k*4096+q*1024}", ("T", k, b))
        e(f"s_add_u32 s{sT0}, s{sWI}, {128*k}")
        e(f"s_lshl_b32 s{sT1}, s{sT0}, 12")
        e(f"s_add_u32 s{sT1}, s{sT1}, {W2P_OFF}")
        e(f"s_cmp_ge_u32 s{sT0}, {NUNIT}")
        e(f"s_cselect_b32 s{sT1}, {BIG}, s{sT1}")
        for b in range(4):
            r = R + (k * 4 + b) * 4
            e.lgwait(lambda t: t == ("T", k, b))
            e.vmem(f"buffer_store_dwordx4 {V(r)}, v{vWL}, {S(SWS)}, s{sT1} offen offset:{b*1024} sc1", ("S", k))
        if k == 0:
            get_nonce("n2")
            e(f"v_mov_b32 v2, s{sNON}")
            e(f"v_mov_b32 v3, s{sNON+1}")
    e.ts()
    for k in range(NU):
        e.vmwait(lambda t: t == ("S", k))
        e(f"s_add_u32 s{sT0}, s{sWI}, {128*k}")
        e(f"s_lshl_b32 s{sT1}, s{sT0}, 7")
        e(f"s_add_u32 s{sT1}, s{sT1}, {W2F_OFF}")
        e(f"s_cmp_ge_u32 s{sT0}, {NUNIT}")
        e(f"s_cselect_b32 s{sT1}, {BIG}, s{sT1}")
        e.vmem(f"buffer_store_dwordx2 v[2:3], v{vZ}, {S(SWS)}, s{sT1} offen sc1", ("F", k))
    e.ts()
    e("s_barrier")


def kdesc(name):
    return f""".amdhsa_kernel {name}
  .amdhsa_next_free_vgpr 512
  .amdhsa_next_free_sgpr 102
  .amdhsa_accum_offset 256
  .amdhsa_group_segment_fixed_size 0
  .amdhsa_kernarg_size 48
  .amdhsa_user_sgpr_count 2
  .amdhsa_user_sgpr_kernarg_segment_ptr 1
  .amdhsa_system_sgpr_workgroup_id_x 1
.end_amdhsa_kernel"""


LDS = max(NS * 32768, 81920)
hdr = [f"; @launch grid=(256,1,1) block=(256,1,1) lds={LDS}",
       '.amdgcn_target "amdgcn-amd-amdhsa--gfx950"', ".text"]

e.l.append(f".globl {KN}\n.p2align 8\n.type {KN},@function\n{KN}:")
e("s_load_dwordx8 s[4:11], s[0:1], 0")
e(f"s_getpc_b64 s[{sPC}:{sPC+1}]")
e.label("L_pc")
e("s_load_dwordx4 s[12:15], s[0:1], 32")
e(f"s_cmp_ge_u32 s2, 256")
e(f"s_cbranch_scc1 L_end")
e("v_and_b32 v1, 63, v0")
e("v_lshrrev_b32 v2, 6, v0")
e(f"s_and_b32 s{sXCD}, s2, 7")
e("v_readfirstlane_b32 s3, v2")
e(f"s_lshr_b32 s{sSLOT}, s2, 3")
e.ts()
e(f"s_cmp_ge_u32 s{sSLOT}, 28")
e("s_cbranch_scc1 L_repack")
gemm_role()
gemm_epilogue_stores()
w_dma(70)
e.ts()
spin("w2a", vFW, 6, SWS)
for b in range(A.wpre):
    w_loads(1)
    w_tr(3)
e(f"v_mov_b32 v2, s{sNON}")
e(f"v_mov_b32 v3, s{sNON+1}")
e.vmwait(lambda t: t == ("S",))
e.vmem(f"buffer_store_dwordx2 v[2:3], v{vZ}, {S(SWS)}, s{sHF} offen sc1", ("F",))
e.ts()
w_loads(NP * 5 - A.wpre - A.wlate)
e.ts()
nts_join = e.nts
vm_join = [t for t in e.vm if t[0] == "W"]
lg_join = list(e.lg)
tr_join = trpos[0]
pp_join = ppos[0]
e("s_branch L_join")
e.label("L_repack")
e.vm = []
e.lg = []
e.nts = 1
wpos[0] = 0
trpos[0] = 0
ppos[0] = NN * 5
repack_role()
w_dma(70)
poll_issue("w2b", vFW, 6, SWS)
spin("w2b", vFW, 6, SWS, slp=A.ssleep)
e.ts()
w_loads(pp_join - NN * 5)
w_tr(tr_join)
assert trpos[0] == tr_join and ppos[0] == pp_join
e("s_waitcnt vmcnt(0) lgkmcnt(0)")
while e.nts < nts_join:
    e.ts()
e.vm = vm_join
e.lg = lg_join
e.label("L_join")
poll_issue("h", vFL, 6, SWS)
w_loads(A.wlate)
w_tr(10 * A.wjoin - trpos[0])
spin("h", vFL, 6, SWS)
e.ts()
phase2_main()
diag_dump()
e.label("L_end")
e.label("L_codeend")
e("s_endpgm")

body = "\n".join(e.l)
ninst = sum(1 for x in e.l if x.startswith("    "))
npf = (ninst * 8 + 8191) // 8192
pf = "\n".join(f"    s_min_u32 s{sT0}, s{sJ}, L_codeend-L_pc\n    s_load_dword s63, s[{sPC}:{sPC+1}], s{sT0}\n    s_add_u32 s{sJ}, s{sJ}, 8192" for k in range(npf))
body = body.replace("@@PF@@", pf)
print("\n".join(hdr) + "\n" + body + "\n" + '.section .rodata,"a"\n.p2align 6\n' + kdesc(KN) + "\n")
```

```python
import sys, argparse
ap = argparse.ArgumentParser()
ap.add_argument("--diag", type=int, default=0)
ap.add_argument("--ns", type=int, default=5)
ap.add_argument("--pf", type=int, default=1)
ap.add_argument("--P", type=int, default=20)
ap.add_argument("--rot1", type=int, default=1)
ap.add_argument("--rot2", type=int, default=1)
ap.add_argument("--map1", type=int, default=214)
ap.add_argument("--nn0", type=int, default=32)
ap.add_argument("--nn", type=int, default=6)
ap.add_argument("--wpre", type=int, default=20)
ap.add_argument("--wlate", type=int, default=0)
ap.add_argument("--fn0", type=int, default=36)
ap.add_argument("--trl", type=int, default=0)
ap.add_argument("--wjoin", type=int, default=12)
ap.add_argument("--ssleep", type=int, default=8)
ap.add_argument("--spf", type=int, default=0)
ap.add_argument("--w2pf", type=int, default=1)
ap.add_argument("--pfn", type=int, default=12)
ap.add_argument("--tsm", type=int, default=0)
ap.add_argument("--hd", type=int, default=3)
ap.add_argument("--sleep", type=int, default=4)
A = ap.parse_args()

KN = "standalone__dense_activation_relu__prompt_kernel"
HP_OFF = 0
W2P_OFF = 0x700000
FLAG_OFF = 0xA00000
W2F_OFF = FLAG_OFF + 0x40000
DIAG_OFF = 0xB00000
WS_SIZE = 0xC00000
BIG = 0x40000000
NS = A.ns
NIT = 10
NN = A.nn
NP = 14 - NN
NU = (NP * 40 - 20 + 127) // 128
NUNIT = NP * 40 - 20
assert NS == 5 and A.hd < 6
SPIN = 20000


class Em:
    def __init__(s):
        s.l = []
        s.vm = []
        s.lg = []
        s.nts = 0

    def __call__(s, x):
        for y in x.split("\n"):
            s.l.append("    " + y)

    def label(s, x):
        s.l.append(x + ":")

    def vmem(s, x, tag):
        s(x)
        s.vm.append(tag)

    def vmwait(s, pred, also=""):
        idx = -1
        for i, t in enumerate(s.vm):
            if pred(t):
                idx = i
        if idx < 0:
            if also:
                s("s_waitcnt " + also)
            return
        n = min(len(s.vm) - 1 - idx, 63)
        s(f"s_waitcnt vmcnt({n}) {also}".rstrip())
        s.vm = s.vm[len(s.vm) - n:] if n else []

    def lds(s, x, tag):
        s(x)
        s.lg.append(tag)

    def lgwait(s, pred):
        idx = -1
        for i, t in enumerate(s.lg):
            if pred(t):
                idx = i
        if idx < 0:
            return
        n = min(len(s.lg) - 1 - idx, 15)
        s(f"s_waitcnt lgkmcnt({n})")
        s.lg = s.lg[len(s.lg) - n:] if n else []

    def clk(s, k):
        if A.diag:
            s(f"s_memtime s[{92+2*k}:{93+2*k}]")

    def ts(s):
        if A.diag:
            k = s.nts
            assert k < 14
            s(f"s_memrealtime s[{64+2*k}:{65+2*k}]")
            s.nts += 1


e = Em()

SX, SW1, SWS, SOUT, SDBG = 16, 20, 24, 28, 32
SW2 = 8
sKW, sKH, sPWB, sPHB = 36, 37, 38, 39
sXCD, sSLOT, sRB, sNT, sT0, sT1, sT2, sT3 = 40, 41, 42, 43, 44, 45, 46, 47
sLDSW, sXO, sWO, sH0, sH1 = 48, 49, 50, 51, 52
sT64, sD80, sP2W, sP2H, sCNT = 53, 54, 55, 56, 57
sNON = 58
sPC = 60
sJ = 62
sKB, sXB, sWB, sBADK, sHF, sOO = 96, 97, 98, 99, 100, 101


def srd(b, ptr, size):
    e(f"s_mov_b32 s{b}, s{ptr}")
    e(f"s_mov_b32 s{b+1}, s{ptr+1}")
    e(f"s_mov_b32 s{b+2}, {size}")
    e(f"s_mov_b32 s{b+3}, 0x00020000")


def S(b):
    return f"s[{b}:{b+3}]"


def V(b, n=4):
    return f"v[{b}:{b+n-1}]"


vX, vW = 208, 212
vB, vAa = 216, 228
FR = [24, 40]
ACC = 56
HOUT = 176
vHS = 8
ACC2 = 176
WX = 136
HR = 24
NHR = 6
vWL, vWL2 = 10, 11
vHL = 12
vRW = 16
vRR = 19
vOS = 20
vFL = 21
vFW = 22
vWD = 120
vWT = 125
sWM = 4
sPPB = 5
sKW2, sKH2 = 6, 7
vZ = 23


def acc(ft, tt):
    return ACC + (tt * 2 + ft) * 16


def wreg(i, dt):
    if i < 12:
        b = (i * 5 + dt) * 4
        return f"a[{b}:{b+3}]"
    b = WX + ((i - 12) * 5 + dt) * 4
    return f"v[{b}:{b+3}]"


def wreg2(i, dt, q):
    if i < 12:
        b = (i * 5 + dt) * 4 + 2 * q
        return f"a[{b}:{b+1}]"
    b = WX + ((i - 12) * 5 + dt) * 4 + 2 * q
    return f"v[{b}:{b+1}]"


def w2_prefetch():
    if not A.w2pf:
        return
    e(f"s_lshl_b32 s{sT0}, s{sSLOT}, 2")
    e(f"s_add_u32 s{sT0}, s{sT0}, s3")
    e(f"s_lshl_b32 s{sT0}, s{sT0}, 13")
    e(f"v_lshlrev_b32 v128, 7, v1")
    e.vmem(f"buffer_load_dword v129, v128, {S(SW2)}, s{sT0} offen", ("PF",))


def code_prefetch():
    e(f"s_lshl_b32 s{sJ}, s{sSLOT}, 2")
    e(f"s_add_u32 s{sJ}, s{sJ}, s3")
    e(f"s_lshl_b32 s{sJ}, s{sJ}, 6")
    e.l.append("@@PF@@")


def p2_setup():
    e(f"s_lshl_b32 s{sT64}, s{sXCD}, 2")
    e(f"s_lshr_b32 s{sT0}, s{sSLOT}, 3")
    e(f"s_add_u32 s{sT64}, s{sT64}, s{sT0}")
    e(f"s_and_b32 s{sD80}, s{sSLOT}, 7")
    e(f"s_mul_i32 s{sPWB}, s3, 40960")
    e(f"s_mul_i32 s{sT0}, s{sD80}, 160")
    e(f"s_add_u32 s{sPWB}, s{sPWB}, s{sT0}")
    e(f"s_mul_i32 s{sWM}, s3, 5120")
    e(f"s_mul_i32 s{sPPB}, s3, 40960")
    e(f"s_mul_i32 s{sT0}, s{sD80}, 5120")
    e(f"s_add_u32 s{sPPB}, s{sPPB}, s{sT0}")
    e(f"s_add_u32 s{sPPB}, s{sPPB}, {W2P_OFF}")
    e(f"s_mul_i32 s{sPHB}, s{sT64}, 54")
    e(f"s_add_u32 s{sPHB}, s{sPHB}, s3")
    e(f"s_lshl_b32 s{sPHB}, s{sPHB}, 12")
    e(f"s_cmp_ge_u32 s3, 2")
    e(f"s_cselect_b32 s{sBADK}, {NP-1}, 99")
    if A.rot2:
        e(f"s_and_b32 s{sT0}, s{sT64}, 3")
        e(f"s_lshl_b32 s{sT0}, s{sT0}, 1")
        e(f"s_add_u32 s{sT0}, s{sT0}, s{sD80}")
        e(f"s_mov_b32 s{sKW}, s{sT0}")
        for _ in range(13 // NN):
            e(f"s_cmp_ge_u32 s{sKW}, {NN}")
            e(f"s_cselect_b32 s{sT1}, {NN}, 0")
            e(f"s_sub_u32 s{sKW}, s{sKW}, s{sT1}")
        e(f"s_mov_b32 s{sKW2}, s{sT0}")
        for _ in range(13 // NP):
            e(f"s_cmp_ge_u32 s{sKW2}, {NP}")
            e(f"s_cselect_b32 s{sT1}, {NP}, 0")
            e(f"s_sub_u32 s{sKW2}, s{sKW2}, s{sT1}")
    else:
        e(f"s_mov_b32 s{sKW}, {NN-1}")
        e(f"s_mov_b32 s{sKW2}, {NP-1}")
    e(f"s_mov_b32 s{sKH}, s{sKW}")
    e(f"s_mov_b32 s{sKH2}, s{sKW2}")
    e(f"v_lshlrev_b32 v{vWL}, 4, v1")
    e(f"v_add_u32 v{vWL2}, 4096, v{vWL}")
    for t in range(4):
        e(f"s_add_u32 s{sT0}, s3, {t}")
        e(f"s_and_b32 s{sT0}, s{sT0}, 3")
        e(f"s_lshl_b32 s{sT1}, s{sT0}, 10")
        e(f"v_add_u32 v{vHL+t}, s{sT1}, v{vWL}")
        if t > 0:
            e(f"s_mul_i32 s{sT1}, s{sT0}, 15360")
            e(f"s_add_u32 s{sT1}, s{sT1}, {(t-1)*5120}")
            e(f"v_add_u32 v{vRW+t-1}, s{sT1}, v{vWL}")
    e(f"s_mul_i32 s{sT1}, s3, 15360")
    e(f"v_add_u32 v{vRR}, s{sT1}, v{vWL}")
    e("v_and_b32 v2, 15, v1")
    e("v_mul_u32_u24 v2, 1280, v2")
    e("v_lshrrev_b32 v3, 4, v1")
    e(f"v_lshl_add_u32 v{vOS}, v3, 3, v2")
    e(f"s_lshl_b32 s{sT0}, s{sT64}, 2")
    e(f"s_add_u32 s{sT0}, s{sT0}, s3")
    e(f"s_mul_i32 s{sOO}, s{sT0}, {16*1280}")
    e(f"s_mul_i32 s{sT1}, s{sD80}, 160")
    e(f"s_add_u32 s{sOO}, s{sOO}, s{sT1}")
    e(f"v_min_u32 v2, 13, v1")
    e(f"s_lshr_b32 s{sT1}, s3, 1")
    e(f"v_lshl_add_u32 v2, v2, 1, s{sT1}")
    e(f"v_min_u32 v2, 26, v2")
    e(f"s_lshl_b32 s{sT0}, s{sT64}, 12")
    e(f"s_add_u32 s{sT0}, s{sT0}, {FLAG_OFF}")
    e(f"v_lshl_add_u32 v{vFL}, v2, 7, s{sT0}")
    e(f"v_min_u32 v2, {2*NP-1}, v1")
    e(f"v_lshrrev_b32 v3, 1, v2")
    e(f"v_lshl_add_u32 v3, v3, 2, s3")
    e(f"v_min_u32 v3, {4*NP-3}, v3")
    e(f"v_mul_u32_u24 v3, 10, v3")
    e(f"v_and_b32 v2, 1, v2")
    e(f"s_mul_i32 s{sT0}, s{sD80}, 5")
    e(f"s_lshr_b32 s{sT0}, s{sT0}, 2")
    e(f"v_add3_u32 v2, v2, v3, s{sT0}")
    e(f"v_lshlrev_b32 v2, 7, v2")
    e(f"v_add_u32 v{vFW}, {W2F_OFF}, v2")
    for j in range(5):
        e(f"v_add_u32 v2, {64*j}, v1")
        e(f"v_mul_u32_u24 v3, 205, v2")
        e(f"v_lshrrev_b32 v3, 11, v3")
        e(f"v_mul_u32_u24 v4, {1280-160}, v3")
        e(f"v_lshl_add_u32 v4, v2, 4, v4")
        if j in (1, 2, 3):
            e(f"v_subrev_u32 v{vWD+j}, {1024*j}, v4")
        elif j == 4:
            e(f"v_mov_b32 v{vWD+4}, v4")
        else:
            e(f"v_mov_b32 v{vWD}, v4")
    e("v_lshrrev_b32 v2, 5, v1")
    e("v_bfe_u32 v3, v1, 4, 1")
    e("v_bfe_u32 v4, v1, 2, 2")
    e("v_lshlrev_b32 v2, 4, v2")
    e("v_lshl_add_u32 v2, v3, 2, v2")
    e("v_add_u32 v2, v2, v4")
    e("v_mul_u32_u24 v2, 160, v2")
    e("v_and_b32 v3, 3, v1")
    e("v_lshl_add_u32 v2, v3, 3, v2")
    e(f"v_add_u32 v{vWT}, s{sWM}, v2")
    e(f"v_add_u32 v{vWT+1}, 61440, v{vWT}")
    e(f"v_add_u32 v{vWT+2}, 122880, v{vWT}")
    e(f"v_lshlrev_b32 v{vZ}, 24, v1")
    e("v_mov_b32 v9, 0")


wq = [(i, dt) for i in range(14) for dt in range(5)]
wpos = [0]


def adv(sk, so, sb, stride, mod, add=0, bad=False):
    e(f"s_add_u32 s{sk}, s{sk}, 1")
    e(f"s_cmp_eq_u32 s{sk}, {mod}")
    e(f"s_cselect_b32 s{sk}, 0, s{sk}")
    e(f"s_mul_i32 s{so}, s{sk}, {stride}")
    e(f"s_add_u32 s{so}, s{so}, s{sb}")
    if add:
        e(f"s_add_u32 s{so}, s{so}, {add}")
    if bad:
        e(f"s_cmp_eq_u32 s{sk}, s{sBADK}")
        e(f"s_cselect_b32 s{so}, {BIG}, s{so}")


trpos = [0]
ppos = [NN * 5]


def w_dma(n, lim=14):
    for _ in range(n):
        if wpos[0] >= NN * 5:
            return
        i, j = wq[wpos[0]]
        if i >= lim:
            return
        if j == 0:
            adv(sKW, sP2W, sPWB, 163840, NN)
            e(f"s_add_u32 m0, s{sWM}, {i*20480}")
            e("s_nop 0")
        if j == 4:
            e(f"s_add_u32 m0, s{sWM}, {i*20480+4096}")
            e("s_nop 0")
        wpos[0] += 1
        e.vmem(f"buffer_load_dwordx4 v{vWD+j}, {S(SW2)}, s{sP2W} offen offset:{1024*(j&3)} lds", ("W", i))


def w_tr(n):
    for _ in range(n):
        i, r = divmod(trpos[0], 10)
        if i >= NN:
            return
        assert wpos[0] >= (i + 1) * 5
        if r == 0:
            e.vmwait(lambda t: t == ("W", i))
        dt, q = divmod(r, 2)
        off = (i % 3) * 20480 + dt * 32 + q * 1280
        e.lds(f"ds_read_b64_tr_b16 {wreg2(i,dt,q)}, v{vWT+i//3} offset:{off}", ("T", i, dt))
        trpos[0] += 1


def w_loads(n):
    for _ in range(n):
        if ppos[0] >= 70:
            return
        i, dt = wq[ppos[0]]
        ppos[0] += 1
        if dt == 0:
            adv(sKW2, sP2W, sPPB, 163840, NP, bad=True)
        if dt < 4:
            e.vmem(f"buffer_load_dwordx4 {wreg(i,dt)}, v{vWL}, {S(SWS)}, s{sP2W} offen offset:{dt*1024} sc1", ("W", i))
        else:
            e.vmem(f"buffer_load_dwordx4 {wreg(i,dt)}, v{vWL2}, {S(SWS)}, s{sP2W} offen sc1", ("W", i))


def h_loads(i, tsel=None):
    for t in (range(4) if tsel is None else [tsel]):
        if t == 0:
            if i < NN:
                adv(sKH, sP2H, sPHB, 16384, NN)
            else:
                adv(sKH2, sP2H, sPHB, 16384, NP, add=NN * 16384, bad=True)
        b = HR + (i % NHR) * 16 + t * 4
        e.vmem(f"buffer_load_dwordx4 {V(b)}, v{vHL+t}, {S(SWS)}, s{sP2H} offen sc1", ("H", i, t))


def spin(name, voff, reg, srdb, cmp_nonce=True, slp=None):
    e.vmwait(lambda t: t == ("P", name))
    e(f"s_mov_b32 s{sCNT}, 0")
    e.label(f"L_spin_{name}")
    if cmp_nonce:
        e(f"v_cmp_eq_u64 vcc, s[{sNON}:{sNON+1}], v[{reg}:{reg+1}]")
    else:
        e(f"v_cmp_ne_u64 vcc, 0, v[{reg}:{reg+1}]")
    e(f"s_add_u32 s{sCNT}, s{sCNT}, 1")
    e("s_cmp_eq_u64 vcc, exec")
    e(f"s_cbranch_scc1 L_ok_{name}")
    e(f"s_cmp_ge_u32 s{sCNT}, {SPIN}")
    e(f"s_cbranch_scc1 L_ok_{name}")
    e(f"s_sleep {A.sleep if slp is None else slp}")
    e(f"buffer_load_dwordx2 v[{reg}:{reg+1}], v{voff}, {S(srdb)}, 0 offen sc1")
    e("s_waitcnt vmcnt(0)")
    e(f"s_branch L_spin_{name}")
    e.label(f"L_ok_{name}")


def poll_issue(name, voff, reg, srdb):
    e.vmem(f"buffer_load_dwordx2 v[{reg}:{reg+1}], v{voff}, {S(srdb)}, 0 offen sc1", ("P", name))


def get_nonce(tag, slp=None):
    spin(tag, 9, 4, SDBG, cmp_nonce=False, slp=slp)
    e(f"v_readfirstlane_b32 s{sNON}, v4")
    e(f"v_readfirstlane_b32 s{sNON+1}, v5")
    e("s_nop 1")


p2bar = []


def phase2_main():
    HD = A.hd
    for i in range(HD):
        h_loads(i)
    e.ts(); e.clk(0)
    for i in range(14):
        for t in range(4):
            e.vmwait(lambda g: g == ("H", i, t) or g == ("W", i))
            if t == 0:
                assert i >= NN or trpos[0] >= (i + 1) * 10
                assert ppos[0] >= (i + 1) * 5
                e.lgwait(lambda g: g[0] == "T" and g[1] == i)
            hb = HR + (i % NHR) * 16 + t * 4
            for dt in range(5):
                d = ACC2 + (t * 5 + dt) * 4
                c = "0" if i == 0 else V(d)
                e(f"v_mfma_f32_16x16x32_bf16 {V(d)}, {wreg(i,dt)}, {V(hb)}, {c}")
                if dt == 1 and i + HD < 14:
                    h_loads(i + HD, t)
                if dt >= 2:
                    w_tr(1)
                if dt == 3:
                    w_loads(1)
        if trpos[0] == NN * 10 and not p2bar:
            p2bar.append(1)
            e.lgwait(lambda g: g[0] == "T")
            e("s_barrier")
    assert ppos[0] == 70 and trpos[0] == NN * 10 and p2bar
    e.ts(); e.clk(1)
    e("s_nop 7")
    for t in range(1, 4):
        for dt in range(5):
            d = ACC2 + (t * 5 + dt) * 4
            e(f"ds_write_b128 v{vRW+t-1}, {V(d)} offset:{dt*1024}")
    e("s_waitcnt lgkmcnt(0)")
    e("s_barrier")
    R = HR
    for j in range(3):
        for dt in range(5):
            e(f"ds_read_b128 {V(R+(j*5+dt)*4)}, v{vRR} offset:{j*5120+dt*1024}")
    for j in range(3):
        e(f"s_waitcnt lgkmcnt({10-5*j})")
        for dt in range(5):
            for r in range(0, 4, 2):
                d = ACC2 + dt * 4 + r
                s_ = R + (j * 5 + dt) * 4 + r
                e(f"v_pk_add_f32 v[{d}:{d+1}], v[{d}:{d+1}], v[{s_}:{s_+1}]")
    for dt in range(5):
        d = ACC2 + dt * 4
        e(f"v_cvt_pk_bf16_f32 v{R+2*dt}, v{d}, v{d+1}")
        e(f"v_cvt_pk_bf16_f32 v{R+2*dt+1}, v{d+2}, v{d+3}")
        e.vmem(f"buffer_store_dwordx2 v[{R+2*dt}:{R+2*dt+1}], v{vOS}, {S(SOUT)}, s{sOO} offen offset:{dt*32}", ("O",))
    e.ts()


def diag_dump():
    if not A.diag:
        return
    e("s_waitcnt lgkmcnt(0)")
    if A.diag == 2:
        e(f"s_cmp_lg_u32 s3, 0")
        e("s_cbranch_scc1 L_end")
        e(f"s_cmp_ge_u32 s{sSLOT}, 28")
        e("s_cbranch_scc1 L_end")
        e("v_mov_b32 v2, 0")
        for k in range(14):
            e(f"s_sub_u32 s{sT0}, s{64+2*k}, s{sNON}")
            e(f"v_writelane_b32 v2, s{sT0}, {k}")
        e("v_lshlrev_b32 v3, 2, v1")
        e("v_add_u32 v3, 8, v3")
        e("v_cmp_gt_u32 vcc, 14, v1")
        e("v_mov_b32 v4, 0x1000000")
        e("v_cndmask_b32 v3, v4, v3, vcc")
        e(f"buffer_atomic_add v2, v3, {S(SDBG)}, 0 offen sc1")
        return
    e(f"s_lshl_b32 s{sT0}, s2, 2")
    e(f"s_add_u32 s{sT0}, s{sT0}, s3")
    e(f"s_lshl_b32 s{sT0}, s{sT0}, 8")
    e(f"s_add_u32 s{sT0}, s{sT0}, {DIAG_OFF}")
    for k in range(16):
        e(f"v_mov_b32 v2, s{64+2*k}")
        e(f"v_mov_b32 v3, s{65+2*k}")
        e(f"buffer_store_dwordx2 v[2:3], v{vZ}, {S(SWS)}, s{sT0} offen offset:{8*k}")
        e("s_nop 1")


def dma(it, part):
    st = it % NS
    if part == 0:
        e(f"s_add_u32 m0, s{sLDSW}, {st*32768}")
        if it > 0:
            e(f"s_add_u32 s{sKB}, s{sKB}, 1")
            e(f"s_cmp_eq_u32 s{sKB}, 10")
            e(f"s_cselect_b32 s{sKB}, 0, s{sKB}")
        e(f"s_lshl_b32 s{sXO}, s{sKB}, 7")
        e(f"s_add_u32 s{sXO}, s{sXO}, s{sXB}")
    if part == 4:
        e(f"s_add_u32 m0, s{sLDSW}, {st*32768+16384}")
        e(f"s_mul_i32 s{sWO}, s{sKB}, {64*3456}")
        e(f"s_add_u32 s{sWO}, s{sWO}, s{sWB}")
    if part < 4:
        e.vmem(f"buffer_load_dwordx4 v{vX+part}, {S(SX)}, s{sXO} offen offset:{1024*part} lds", ("D", it))
    else:
        e.vmem(f"buffer_load_dwordx4 v{vW+part-4}, {S(SW1)}, s{sWO} offen offset:{1024*(part-4)} lds", ("D", it))


def frag_reads(n, half):
    it, ks = divmod(n, 4)
    st = it % NS
    j, so = st >> 1, (st & 1) * 32768
    f = FR[n & 1]
    ft = tt = half
    for q in range(2):
        e.lds(f"ds_read_b64_tr_b16 v[{f+ft*4+2*q}:{f+ft*4+2*q+1}], v{vAa+j*2+ft} offset:{so+ks*4096+q*1024}", ("A", n, ft))
    e.lds(f"ds_read_b128 {V(f+8+tt*4)}, v{vB+j*4+ks} offset:{so+tt*4096}", ("B", n, tt))


def mfma1(n, ft, tt):
    f = FR[n & 1]
    a = acc(ft, tt)
    c = "0" if n == 0 else V(a, 16)
    e(f"v_mfma_f32_32x32x16_bf16 {V(a,16)}, {V(f+ft*4)}, {V(f+8+tt*4)}, {c}")


def gemm_role():
    if A.map1 == 47:
        e(f"s_mul_i32 s{sT0}, s{sSLOT}, 37")
        e(f"s_lshr_b32 s{sT0}, s{sT0}, 8")
        e(f"s_mul_i32 s{sT1}, s{sT0}, 7")
        e(f"s_sub_u32 s{sT1}, s{sSLOT}, s{sT1}")
        if A.rot1:
            e(f"s_mul_i32 s{sKB}, s{sT1}, 3")
            e(f"s_mul_i32 s{sT2}, s{sT0}, 5")
            e(f"s_lshr_b32 s{sT2}, s{sT2}, 1")
            e(f"s_add_u32 s{sKB}, s{sKB}, s{sT2}")
            e(f"s_lshr_b32 s{sT2}, s{sXCD}, 1")
            e(f"s_add_u32 s{sKB}, s{sKB}, s{sT2}")
            e(f"s_and_b32 s{sT2}, s{sXCD}, 1")
            e(f"s_add_u32 s{sKB}, s{sKB}, s{sT2}")
        e(f"s_lshr_b32 s{sRB}, s{sXCD}, 1")
        e(f"s_lshl_b32 s{sRB}, s{sRB}, 2")
        e(f"s_add_u32 s{sRB}, s{sRB}, s{sT0}")
        e(f"s_and_b32 s{sNT}, s{sXCD}, 1")
        e(f"s_mul_i32 s{sNT}, s{sNT}, 7")
        e(f"s_add_u32 s{sNT}, s{sNT}, s{sT1}")
    else:
        e(f"s_cmp_ge_u32 s{sSLOT}, 14")
        e(f"s_cselect_b32 s{sT0}, 1, 0")
        e(f"s_cselect_b32 s{sT1}, 14, 0")
        e(f"s_sub_u32 s{sNT}, s{sSLOT}, s{sT1}")
        e(f"s_lshl_b32 s{sRB}, s{sXCD}, 1")
        e(f"s_add_u32 s{sRB}, s{sRB}, s{sT0}")
        if A.rot1:
            e(f"s_mul_i32 s{sKB}, s{sNT}, 3")
            e(f"s_mul_i32 s{sT2}, s{sT0}, 5")
            e(f"s_add_u32 s{sKB}, s{sKB}, s{sT2}")
            e(f"s_add_u32 s{sKB}, s{sKB}, s{sXCD}")
    if A.rot1:
        e(f"s_mul_i32 s{sT2}, s{sKB}, 205")
        e(f"s_lshr_b32 s{sT2}, s{sT2}, 11")
        e(f"s_mul_i32 s{sT2}, s{sT2}, 10")
        e(f"s_sub_u32 s{sKB}, s{sKB}, s{sT2}")
    else:
        e(f"s_mov_b32 s{sKB}, 0")
    e(f"s_lshl_b32 s{sLDSW}, s3, 12")
    e(f"s_lshl_b32 s{sT0}, s{sRB}, 2")
    e(f"s_add_u32 s{sT0}, s{sT0}, s3")
    e(f"s_mul_i32 s{sXB}, s{sT0}, {32*1280}")
    e(f"s_mul_i32 s{sWB}, s3, {16*3456}")
    e(f"s_lshl_b32 s{sT0}, s{sNT}, 8")
    e(f"s_add_u32 s{sWB}, s{sWB}, s{sT0}")
    e("v_lshrrev_b32 v2, 3, v1")
    e("v_mul_u32_u24 v2, 1280, v2")
    e("v_and_b32 v3, 7, v1")
    e("v_lshrrev_b32 v4, 4, v1")
    e("v_xor_b32 v5, v3, v4")
    e("v_xor_b32 v6, 4, v5")
    e("v_lshl_add_u32 v5, v5, 4, v2")
    e("v_lshl_add_u32 v6, v6, 4, v2")
    for i in range(4):
        e(f"v_add_u32 v{vX+i}, {i*(10240-1024)}, v{5+(i&1)}")
    e("v_mul_u32_u24 v2, 3456, v4")
    e("v_and_b32 v3, 15, v1")
    e("v_lshlrev_b32 v5, 2, v4")
    e("v_xor_b32 v3, v3, v5")
    e("v_lshl_add_u32 v2, v3, 4, v2")
    for i in range(4):
        e(f"v_add_u32 v{vW+i}, {i*(13824-1024)}, v2")
    e("s_waitcnt lgkmcnt(0)")
    srd(SX, 4, 2048 * 1280)
    srd(SW1, 6, 640 * 3456)
    allq = [(it, p) for it in range(NIT) for p in range(8)]
    for _ in range(min(A.P, 10)):
        dma(*allq.pop(0))
    srd(SWS, 14, WS_SIZE)
    srd(SOUT, 10, 2048 * 1280)
    srd(SDBG, 12, 256)
    e(f"s_mov_b32 s10, {1728*1280}")
    e(f"s_mov_b32 s11, 0x00020000")
    if A.pf:
        code_prefetch()
    e("v_and_b32 v2, 31, v1")
    e("v_lshrrev_b32 v3, 5, v1")
    e("v_bfe_u32 v4, v1, 1, 3")
    e(f"s_and_b32 s{sT0}, s3, 1")
    e(f"s_lshr_b32 s{sT1}, s3, 1")
    e(f"s_lshl_b32 s{sT2}, s{sT0}, 13")
    e(f"v_lshl_add_u32 v2, v2, 7, s{sT2}")
    for ks in range(4):
        e(f"v_or_b32 v5, {2*ks}, v3")
        e("v_xor_b32 v5, v5, v4")
        e(f"v_lshl_add_u32 v{vB+ks}, v5, 4, v2")
    nj = (NS + 1) // 2
    for j in range(1, nj):
        for ks in range(4):
            e(f"v_add_u32 v{vB+j*4+ks}, {j*65536}, v{vB+ks}")
    e("v_bfe_u32 v2, v1, 2, 2")
    e("v_lshl_add_u32 v5, v3, 3, v2")
    e("v_lshlrev_b32 v5, 8, v5")
    e("v_and_b32 v6, 1, v1")
    e("v_lshl_add_u32 v5, v6, 3, v5")
    e("v_add_u32 v5, 16384, v5")
    e("v_bfe_u32 v6, v1, 4, 1")
    e("v_bfe_u32 v7, v1, 1, 1")
    e("v_lshl_add_u32 v6, v6, 1, v7")
    e(f"s_lshl_b32 s{sT2}, s{sT1}, 3")
    e(f"v_or_b32 v6, s{sT2}, v6")
    e("v_lshlrev_b32 v2, 2, v2")
    for ft in range(2):
        e(f"v_or_b32 v7, {4*ft}, v6")
        e("v_xor_b32 v7, v7, v2")
        e(f"v_lshl_add_u32 v{vAa+ft}, v7, 4, v5")
    for j in range(1, nj):
        for ft in range(2):
            e(f"v_add_u32 v{vAa+j*2+ft}, {j*65536}, v{vAa+ft}")
    e("v_bfe_u32 v5, v1, 4, 1")
    e("v_and_b32 v6, 15, v1")
    e("v_lshl_add_u32 v6, v3, 4, v6")
    e("v_lshlrev_b32 v6, 4, v6")
    e(f"v_lshl_add_u32 v{vHS}, v5, 10, v6")
    e(f"s_lshl_b32 s{sT2}, s{sRB}, 1")
    e(f"s_add_u32 s{sT2}, s{sT2}, s{sT0}")
    e(f"s_lshl_b32 s{sT3}, s{sNT}, 1")
    e(f"s_add_u32 s{sT3}, s{sT3}, s{sT1}")
    e(f"s_lshl_b32 s{sHF}, s{sT2}, 5")
    e(f"s_add_u32 s{sHF}, s{sHF}, s{sT3}")
    e(f"s_lshl_b32 s{sHF}, s{sHF}, 7")
    e(f"s_add_u32 s{sHF}, s{sHF}, {FLAG_OFF}")
    e(f"s_mul_i32 s{sT2}, s{sT2}, 27")
    e(f"s_add_u32 s{sT2}, s{sT2}, s{sT3}")
    e(f"s_lshl_b32 s{sH0}, s{sT2}, 13")
    e(f"s_cmp_ge_u32 s{sT3}, 27")
    e(f"s_cselect_b32 s{sH0}, {BIG}, s{sH0}")
    e(f"s_cselect_b32 s{sHF}, {BIG}, s{sHF}")
    e(f"s_add_u32 s{sH1}, s{sH0}, 4096")
    p2_setup()
    for _ in range(A.P - min(A.P, 10)):
        dma(*allq.pop(0))
    if A.pfn < 0:
        w2_prefetch()
    e.ts()
    e.vmwait(lambda t: t == ("D", 0))
    e("s_barrier")
    e.ts()
    frag_reads(0, 0)
    frag_reads(0, 1)
    freed = [NS - 1]
    wlim = [0]
    WLIM = {5: 1, 6: 3, 7: 4, 8: 6}

    def filler():
        if allq:
            if allq[0][0] <= freed[0]:
                dma(*allq.pop(0))
        else:
            w_dma(1, wlim[0])
    for it in range(NIT):
        for ks in range(4):
            n = it * 4 + ks
            e.lgwait(lambda t: t in (("A", n, 0), ("B", n, 0)))
            mfma1(n, 0, 0)
            if ks == 3 and it < NIT - 1:
                e.lg = []
                e.vmwait(lambda t: t == ("D", it + 1), "lgkmcnt(0)")
                e("s_barrier")
                freed[0] = it + NS
                wlim[0] = WLIM.get(it, 0)
            if n + 1 < 4 * NIT:
                frag_reads(n + 1, 0)
            e.lgwait(lambda t: t == ("A", n, 1))
            mfma1(n, 1, 0)
            if n + 1 < 4 * NIT:
                frag_reads(n + 1, 1)
            e.lgwait(lambda t: t == ("B", n, 1))
            mfma1(n, 0, 1)
            filler()
            if n == A.pfn:
                w2_prefetch()
            if n == A.nn0 - 4:
                poll_issue("n1", 9, 4, SDBG)
            if n == A.nn0:
                get_nonce("n1")
            if n == A.fn0:
                poll_issue("w2a", vFW, 6, SWS)
            mfma1(n, 1, 1)
            filler()
        if it % 3 == 0:
            e.ts()
    assert not allq
    e("s_barrier")


def gemm_epilogue_stores():
    k = 0
    e("s_nop 6")
    for (ft, tt) in [(0, 0), (1, 0), (0, 1), (1, 1)]:
        a = acc(ft, tt)
        h = HOUT + k * 8
        k += 1
        for c in range(2):
            for p in range(4 * c, 4 * c + 4):
                e(f"v_cvt_pk_bf16_f32 v{h+p}, v{a+2*p}, v{a+2*p+1}")
            for p in range(4 * c, 4 * c + 4):
                e(f"v_pk_max_i16 v{h+p}, v{h+p}, 0")
            e.vmem(f"buffer_store_dwordx4 {V(h+4*c)}, v{vHS}, {S(SWS)}, s{sH0+ft} offen offset:{tt*2048+c*512} sc1", ("S",))


def repack_role():
    sWI, sL = sRB, sLDSW
    e(f"s_sub_u32 s{sWI}, s{sSLOT}, 28")
    e(f"s_lshl_b32 s{sWI}, s{sWI}, 3")
    e(f"s_add_u32 s{sWI}, s{sWI}, s{sXCD}")
    e(f"s_lshl_b32 s{sWI}, s{sWI}, 2")
    e(f"s_add_u32 s{sWI}, s{sWI}, s3")
    e(f"s_mul_i32 s{sL}, s3, {NU*4096}")
    e("v_lshrrev_b32 v2, 3, v1")
    e("v_mul_u32_u24 v2, 1280, v2")
    e("v_and_b32 v3, 7, v1")
    e("v_bfe_u32 v4, v1, 4, 2")
    e("v_lshlrev_b32 v4, 1, v4")
    e("v_xor_b32 v3, v3, v4")
    e("v_lshl_add_u32 v2, v3, 4, v2")
    for i in range(4):
        e(f"v_add_u32 v{vX+i}, {i*(10240-1024)}, v2")
    e("s_waitcnt lgkmcnt(0)")
    srd(SDBG, 12, 256)
    e("s_cmp_lg_u32 s{0}, 124".format(sWI))
    e("s_cbranch_scc1 L_nononce")
    e(f"s_memrealtime s[{sNON}:{sNON+1}]")
    e("s_waitcnt lgkmcnt(0)")
    e(f"s_or_b32 s{sNON+1}, s{sNON+1}, 0x40000000")
    e(f"v_mov_b32 v2, s{sNON}")
    e(f"v_mov_b32 v3, s{sNON+1}")
    e("v_lshlrev_b32 v4, 24, v1")
    e(f"buffer_store_dwordx2 v[2:3], v4, {S(SDBG)}, 0 offen sc1")
    e.label("L_nononce")
    srd(SOUT, 10, 2048 * 1280)
    e(f"s_mov_b32 s10, {1728*1280}")
    e(f"s_mov_b32 s11, 0x00020000")
    for k in range(NU):
        e(f"s_add_u32 s{sT0}, s{sWI}, {128*k}")
        e(f"s_mul_i32 s{sT1}, s{sT0}, 205")
        e(f"s_lshr_b32 s{sT1}, s{sT1}, 11")
        e(f"s_mul_i32 s{sT2}, s{sT1}, 10")
        e(f"s_sub_u32 s{sT2}, s{sT0}, s{sT2}")
        e(f"s_mul_i32 s{sT1}, s{sT1}, 40960")
        e(f"s_lshl_b32 s{sT2}, s{sT2}, 7")
        e(f"s_add_u32 s{sT1}, s{sT1}, s{sT2}")
        e(f"s_add_u32 s{sT1}, s{sT1}, {NN*163840}")
        e(f"s_cmp_ge_u32 s{sT0}, {NUNIT}")
        e(f"s_cselect_b32 s{sT1}, {BIG}, s{sT1}")
        e(f"s_add_u32 m0, s{sL}, {k*4096}")
        e("s_nop 0")
        for i in range(4):
            e.vmem(f"buffer_load_dwordx4 v{vX+i}, {S(SW2)}, s{sT1} offen offset:{1024*i} lds", ("R", k))
    w2_prefetch()
    srd(SWS, 14, WS_SIZE)
    if A.pf:
        code_prefetch()
    e("v_lshrrev_b32 v2, 5, v1")
    e("v_bfe_u32 v3, v1, 4, 1")
    e("v_bfe_u32 v4, v1, 2, 2")
    e("v_lshlrev_b32 v2, 4, v2")
    e("v_lshl_add_u32 v2, v3, 2, v2")
    e("v_add_u32 v2, v2, v4")
    e("v_lshlrev_b32 v2, 7, v2")
    e("v_and_b32 v5, 1, v1")
    e("v_lshl_add_u32 v2, v5, 3, v2")
    e(f"v_add_u32 v2, s{sL}, v2")
    e("v_lshrrev_b32 v4, 1, v4")
    e("v_lshl_add_u32 v3, v3, 1, v4")
    e("v_lshlrev_b32 v3, 1, v3")
    e("v_bfe_u32 v5, v1, 1, 1")
    for b in range(4):
        e(f"v_xor_b32 v6, {2*b}, v3")
        e("v_or_b32 v6, v6, v5")
        e(f"v_lshl_add_u32 v{vW+b}, v6, 4, v2")
    p2_setup()
    poll_issue("n2", 9, 4, SDBG)
    e.ts()
    R = 24
    for k in range(NU):
        e.vmwait(lambda t: t == ("R", k))
        for b in range(4):
            r = R + (k * 4 + b) * 4
            for q in range(2):
                e.lds(f"ds_read_b64_tr_b16 v[{r+2*q}:{r+2*q+1}], v{vW+b} offset:{k*4096+q*1024}", ("T", k, b))
        e(f"s_add_u32 s{sT0}, s{sWI}, {128*k}")
        e(f"s_lshl_b32 s{sT1}, s{sT0}, 12")
        e(f"s_add_u32 s{sT1}, s{sT1}, {W2P_OFF}")
        e(f"s_cmp_ge_u32 s{sT0}, {NUNIT}")
        e(f"s_cselect_b32 s{sT1}, {BIG}, s{sT1}")
        for b in range(4):
            r = R + (k * 4 + b) * 4
            e.lgwait(lambda t: t == ("T", k, b))
            e.vmem(f"buffer_store_dwordx4 {V(r)}, v{vWL}, {S(SWS)}, s{sT1} offen offset:{b*1024} sc1", ("S", k))
        if k == 0:
            get_nonce("n2")
            e(f"v_mov_b32 v2, s{sNON}")
            e(f"v_mov_b32 v3, s{sNON+1}")
    e.ts()
    for k in range(NU):
        e.vmwait(lambda t: t == ("S", k))
        e(f"s_add_u32 s{sT0}, s{sWI}, {128*k}")
        e(f"s_lshl_b32 s{sT1}, s{sT0}, 7")
        e(f"s_add_u32 s{sT1}, s{sT1}, {W2F_OFF}")
        e(f"s_cmp_ge_u32 s{sT0}, {NUNIT}")
        e(f"s_cselect_b32 s{sT1}, {BIG}, s{sT1}")
        e.vmem(f"buffer_store_dwordx2 v[2:3], v{vZ}, {S(SWS)}, s{sT1} offen sc1", ("F", k))
    e.ts()
    e("s_barrier")


def kdesc(name):
    return f""".amdhsa_kernel {name}
  .amdhsa_next_free_vgpr 512
  .amdhsa_next_free_sgpr 102
  .amdhsa_accum_offset 256
  .amdhsa_group_segment_fixed_size 0
  .amdhsa_kernarg_size 48
  .amdhsa_user_sgpr_count 2
  .amdhsa_user_sgpr_kernarg_segment_ptr 1
  .amdhsa_system_sgpr_workgroup_id_x 1
.end_amdhsa_kernel"""


LDS = max(NS * 32768, 81920)
hdr = [f"; @launch grid=(256,1,1) block=(256,1,1) lds={LDS}",
       '.amdgcn_target "amdgcn-amd-amdhsa--gfx950"', ".text"]

e.l.append(f".globl {KN}\n.p2align 8\n.type {KN},@function\n{KN}:")
e("s_load_dwordx8 s[4:11], s[0:1], 0")
e(f"s_getpc_b64 s[{sPC}:{sPC+1}]")
e.label("L_pc")
e("s_load_dwordx4 s[12:15], s[0:1], 32")
e(f"s_cmp_ge_u32 s2, 256")
e(f"s_cbranch_scc1 L_end")
e("v_and_b32 v1, 63, v0")
e("v_lshrrev_b32 v2, 6, v0")
e(f"s_and_b32 s{sXCD}, s2, 7")
e("v_readfirstlane_b32 s3, v2")
e(f"s_lshr_b32 s{sSLOT}, s2, 3")
e.ts()
e(f"s_cmp_ge_u32 s{sSLOT}, 28")
e("s_cbranch_scc1 L_repack")
gemm_role()
gemm_epilogue_stores()
w_dma(70)
e.ts()
spin("w2a", vFW, 6, SWS)
for b in range(A.wpre):
    w_loads(1)
    w_tr(3)
e(f"v_mov_b32 v2, s{sNON}")
e(f"v_mov_b32 v3, s{sNON+1}")
e.vmwait(lambda t: t == ("S",))
e.vmem(f"buffer_store_dwordx2 v[2:3], v{vZ}, {S(SWS)}, s{sHF} offen sc1", ("F",))
e.ts()
w_loads(NP * 5 - A.wpre - A.wlate)
e.ts()
nts_join = e.nts
vm_join = [t for t in e.vm if t[0] == "W"]
lg_join = list(e.lg)
tr_join = trpos[0]
pp_join = ppos[0]
e("s_branch L_join")
e.label("L_repack")
e.vm = []
e.lg = []
e.nts = 1
wpos[0] = 0
trpos[0] = 0
ppos[0] = NN * 5
repack_role()
w_dma(70)
poll_issue("w2b", vFW, 6, SWS)
spin("w2b", vFW, 6, SWS, slp=A.ssleep)
e.ts()
w_loads(pp_join - NN * 5)
w_tr(tr_join)
assert trpos[0] == tr_join and ppos[0] == pp_join
e("s_waitcnt vmcnt(0) lgkmcnt(0)")
while e.nts < nts_join:
    e.ts()
e.vm = vm_join
e.lg = lg_join
e.label("L_join")
poll_issue("h", vFL, 6, SWS)
w_loads(A.wlate)
w_tr(10 * A.wjoin - trpos[0])
spin("h", vFL, 6, SWS)
e.ts()
phase2_main()
diag_dump()
e.label("L_end")
e.label("L_codeend")
e("s_endpgm")

body = "\n".join(e.l)
ninst = sum(1 for x in e.l if x.startswith("    "))
npf = (ninst * 8 + 8191) // 8192
pf = "\n".join(f"    s_min_u32 s{sT0}, s{sJ}, L_codeend-L_pc\n    s_load_dword s63, s[{sPC}:{sPC+1}], s{sT0}\n    s_add_u32 s{sJ}, s{sJ}, 8192" for k in range(npf))
body = body.replace("@@PF@@", pf)
print("\n".join(hdr) + "\n" + body + "\n" + '.section .rodata,"a"\n.p2align 6\n' + kdesc(KN) + "\n")
```

```python
import sys, argparse
ap = argparse.ArgumentParser()
ap.add_argument("--diag", type=int, default=0)
ap.add_argument("--ns", type=int, default=5)
ap.add_argument("--pf", type=int, default=1)
ap.add_argument("--P", type=int, default=20)
ap.add_argument("--rot1", type=int, default=1)
ap.add_argument("--rot2", type=int, default=1)
ap.add_argument("--map1", type=int, default=214)
ap.add_argument("--nn0", type=int, default=24)
ap.add_argument("--nn", type=int, default=6)
ap.add_argument("--wpre", type=int, default=20)
ap.add_argument("--wlate", type=int, default=0)
ap.add_argument("--fn0", type=int, default=36)
ap.add_argument("--trl", type=int, default=0)
ap.add_argument("--wjoin", type=int, default=12)
ap.add_argument("--ssleep", type=int, default=8)
ap.add_argument("--spf", type=int, default=0)
ap.add_argument("--w2pf", type=int, default=1)
ap.add_argument("--pfn", type=int, default=12)
ap.add_argument("--fn1", type=int, default=99)
ap.add_argument("--srate", type=int, default=2)
ap.add_argument("--pfs", type=int, default=1)
ap.add_argument("--pfp", type=int, default=8)
ap.add_argument("--loc", type=int, default=1)
ap.add_argument("--tsm", type=int, default=0)
ap.add_argument("--zn", type=int, default=10)
ap.add_argument("--zs", type=int, default=1)
ap.add_argument("--zf", type=int, default=26)
ap.add_argument("--rn0", type=int, default=35)
ap.add_argument("--rn1", type=int, default=39)
ap.add_argument("--wfirst", type=int, default=10)
ap.add_argument("--w2late", type=int, default=0)
ap.add_argument("--zplain", type=int, default=0)
ap.add_argument("--qn", type=int, default=99)
ap.add_argument("--qs", type=int, default=2)
ap.add_argument("--split", type=int, default=0)
ap.add_argument("--noside", type=int, default=0)
ap.add_argument("--tl", type=int, default=5)
ap.add_argument("--qp", type=int, default=2)
ap.add_argument("--sord", type=int, default=1)
ap.add_argument("--np", type=int, default=2)
ap.add_argument("--hd", type=int, default=3)
ap.add_argument("--sleep", type=int, default=4)
ap.add_argument("--clk", type=str, default="7,11")
A = ap.parse_args()
CLK = [int(x) for x in A.clk.split(",")]

KN = "standalone__dense_activation_relu__prompt_kernel"
HP_OFF = 0
W2P_OFF = 0x700000
FLAG_OFF = 0xA00000
W2F_OFF = FLAG_OFF + 0x40000
REG_OFF = FLAG_OFF + 0x60000
DIAG_OFF = 0xB00000
WS_SIZE = 0xC00000
BIG = 0x40000000
NS = A.ns
NIT = 10
NN = A.nn
NP = 14 - NN
NU = (NP * 40 - 20 + 127) // 128
NUNIT = NP * 40 - 20
assert NS == 5 and A.hd < 6
SPIN = 20000


class Em:
    def __init__(s):
        s.l = []
        s.vm = []
        s.lg = []
        s.nts = 0

    def __call__(s, x):
        for y in x.split("\n"):
            s.l.append("    " + y)

    def label(s, x):
        s.l.append(x + ":")

    def vmem(s, x, tag):
        s(x)
        s.vm.append(tag)

    def vmwait(s, pred, also=""):
        idx = -1
        for i, t in enumerate(s.vm):
            if pred(t):
                idx = i
        if idx < 0:
            if also:
                s("s_waitcnt " + also)
            return
        n = min(len(s.vm) - 1 - idx, 63)
        s(f"s_waitcnt vmcnt({n}) {also}".rstrip())
        s.vm = s.vm[len(s.vm) - n:] if n else []

    def lds(s, x, tag):
        s(x)
        s.lg.append(tag)

    def lgwait(s, pred):
        idx = -1
        for i, t in enumerate(s.lg):
            if pred(t):
                idx = i
        if idx < 0:
            return
        n = min(len(s.lg) - 1 - idx, 15)
        s(f"s_waitcnt lgkmcnt({n})")
        s.lg = s.lg[len(s.lg) - n:] if n else []

    def clk(s, k):
        if A.diag:
            s(f"s_memtime s[{92+2*k}:{93+2*k}]")

    def ts(s):
        if A.diag:
            k = s.nts
            if A.tsm and k >= 13:
                k = 13
                s.nts = 12
            assert k < 14
            s(f"s_memrealtime s[{64+2*k}:{65+2*k}]")
            if k in CLK:
                s.clk(CLK.index(k))
            s.nts += 1


e = Em()

SX, SW1, SWS, SOUT, SDBG = 16, 20, 24, 28, 32
SW2 = 8
sKW, sKH, sPWB, sPHB = 36, 37, 38, 39
sXCD, sSLOT, sRB, sNT, sT0, sT1, sT2, sT3 = 40, 41, 42, 43, 44, 45, 46, 47
sLDSW, sXO, sWO, sH0, sH1 = 48, 49, 50, 51, 52
sT64, sD80, sP2W, sP2H, sCNT = 53, 54, 55, 56, 57
sNON = 58
sPC = 60
sJ = 62
sKB, sXB, sWB, sBADK, sHF, sOO = 96, 97, 98, 99, 100, 101


def srd(b, ptr, size):
    e(f"s_mov_b32 s{b}, s{ptr}")
    e(f"s_mov_b32 s{b+1}, s{ptr+1}")
    e(f"s_mov_b32 s{b+2}, {size}")
    e(f"s_mov_b32 s{b+3}, 0x00020000")


def S(b):
    return f"s[{b}:{b+3}]"


def V(b, n=4):
    return f"v[{b}:{b+n-1}]"


vX, vW = 208, 212
vB, vAa = 216, 228
FR = [24, 40]
ACC = 56
HOUT = 176
vHS = 8
ACC2 = 176
WX = 136
HR = 24
NHR = 6
vWL, vWL2 = 10, 11
vHL = 12
vRW = 16
vRR = 19
vOS = 20
vFL = 21
vFW = 22
vWD = 120
vWT = 125
sWM = 4
sPPB = 5
sKW2, sKH2 = 6, 7
sXCC, sLOC, sPFB = 12, 13, 14
vZ = 23
vEXP = 130
vPD = 132
vRG = 134
vPZ = 136
sHS = [48, 49, 50, 96, 97, 98]
sPO = 15
sREG = 0


def acc(ft, tt):
    return ACC + (tt * 2 + ft) * 16


def wreg(i, dt):
    if i < 12:
        b = (i * 5 + dt) * 4
        return f"a[{b}:{b+3}]"
    b = WX + ((i - 12) * 5 + dt) * 4
    return f"v[{b}:{b+3}]"


def wreg2(i, dt, q):
    if i < 12:
        b = (i * 5 + dt) * 4 + 2 * q
        return f"a[{b}:{b+1}]"
    b = WX + ((i - 12) * 5 + dt) * 4 + 2 * q
    return f"v[{b}:{b+1}]"


def w2_prefetch(k=None):
    if not A.w2pf:
        return
    NPF = A.pfp
    per = 64 // NPF
    for kk in (range(NPF) if k is None else [k]):
        if kk == 0:
            e(f"s_lshl_b32 s{sPFB}, s{sSLOT}, 2")
            e(f"s_add_u32 s{sPFB}, s{sPFB}, s3")
            e(f"s_lshl_b32 s{sPFB}, s{sPFB}, 13")
            e(f"v_lshrrev_b32 v128, {NPF.bit_length()-1}, v1")
            e(f"v_lshlrev_b32 v128, 7, v128")
        else:
            e(f"s_add_u32 s{sPFB}, s{sPFB}, {per*128}")
        e.vmem(f"buffer_load_dword v129, v128, {S(SW2)}, s{sPFB} offen", ("PF",))


def get_xcc():
    e(f"s_getreg_b32 s{sXCC}, hwreg(HW_REG_XCC_ID)")
    e(f"s_and_b32 s{sXCC}, s{sXCC}, 15")


LPW = (NUNIT * 32 + 111) // 112
QP = A.qp
QL = (LPW + QP - 1) // QP
assert QL <= 64


def w2p_prefetch(k):
    if k == 0:
        e(f"s_lshl_b32 s{sJ}, s{sSLOT}, 2")
        e(f"s_add_u32 s{sJ}, s{sJ}, s3")
        e(f"s_mul_i32 s{sJ}, s{sJ}, {QL*QP*128}")
        e(f"s_add_u32 s{sJ}, s{sJ}, {W2P_OFF}")
        e(f"v_min_u32 v135, {QL-1}, v1")
        e(f"v_lshlrev_b32 v135, 7, v135")
    else:
        e(f"s_add_u32 s{sJ}, s{sJ}, {QL*128}")
    e.vmem(f"buffer_load_dword v129, v135, {S(SWS)}, s{sJ} offen sc1", ("PF",))


def set_exp():
    e(f"s_xor_b32 s{sT0}, s{sNON}, s{sXCC}")
    e(f"v_mov_b32 v4, s{sT0}")
    e(f"v_mov_b32 v5, s{sNON+1}")
    e(f"v_mov_b32 v2, s{sNON}")
    e(f"v_mov_b32 v3, s{sNON+1}")


def reg_store():
    if A.loc:
        e.vmem(f"buffer_store_dwordx2 v[4:5], v{vZ}, {S(SWS)}, s{sREG} offen sc1", ("G",))


def comb_decide():
    if not A.loc:
        return
    e.vmwait(lambda t: t == ("P", "r"))
    e(f"v_cmp_ne_u64 vcc, v[4:5], v[{vPD}:{vPD+1}]")
    e(f"s_or_b32 s{sLOC}, vcc_lo, vcc_hi")


def h_flag_store():
    if A.loc:
        e(f"s_cmp_lg_u32 s{sLOC}, 0")
        e("s_cbranch_scc1 L_fl_far")
        e(f"buffer_store_dwordx2 v[2:3], v{vZ}, {S(SWS)}, s{sHF} offen")
        e("s_branch L_fl_done")
        e.label("L_fl_far")
    e.vmem(f"buffer_store_dwordx2 v[2:3], v{vZ}, {S(SWS)}, s{sHF} offen sc1", ("F",))
    if A.loc:
        e.label("L_fl_done")


def code_prefetch():
    e(f"s_lshl_b32 s{sJ}, s{sSLOT}, 2")
    e(f"s_add_u32 s{sJ}, s{sJ}, s3")
    e(f"s_lshl_b32 s{sJ}, s{sJ}, 6")
    e.l.append("@@PF@@")


def p2_setup():
    e(f"s_lshl_b32 s{sT64}, s{sXCD}, 2")
    e(f"s_lshr_b32 s{sT0}, s{sSLOT}, 3")
    e(f"s_add_u32 s{sT64}, s{sT64}, s{sT0}")
    e(f"s_and_b32 s{sD80}, s{sSLOT}, 7")
    e(f"s_mul_i32 s{sPWB}, s3, 40960")
    e(f"s_mul_i32 s{sT0}, s{sD80}, 160")
    e(f"s_add_u32 s{sPWB}, s{sPWB}, s{sT0}")
    e(f"s_mul_i32 s{sWM}, s3, 5120")
    e(f"s_mul_i32 s{sPPB}, s3, 40960")
    e(f"s_mul_i32 s{sT0}, s{sD80}, 5120")
    e(f"s_add_u32 s{sPPB}, s{sPPB}, s{sT0}")
    e(f"s_add_u32 s{sPPB}, s{sPPB}, {W2P_OFF}")
    e(f"s_mul_i32 s{sPHB}, s{sT64}, 54")
    e(f"s_add_u32 s{sPHB}, s{sPHB}, s3")
    e(f"s_lshl_b32 s{sPHB}, s{sPHB}, 12")
    e(f"s_cmp_ge_u32 s3, 2")
    e(f"s_cselect_b32 s{sBADK}, {NP-1}, 99")
    if A.rot2:
        e(f"s_and_b32 s{sT0}, s{sT64}, 3")
        e(f"s_lshl_b32 s{sT0}, s{sT0}, 1")
        e(f"s_add_u32 s{sT0}, s{sT0}, s{sD80}")
        e(f"s_mov_b32 s{sKW}, s{sT0}")
        for _ in range(13 // NN):
            e(f"s_cmp_ge_u32 s{sKW}, {NN}")
            e(f"s_cselect_b32 s{sT1}, {NN}, 0")
            e(f"s_sub_u32 s{sKW}, s{sKW}, s{sT1}")
        e(f"s_mov_b32 s{sKW2}, s{sT0}")
        for _ in range(13 // NP):
            e(f"s_cmp_ge_u32 s{sKW2}, {NP}")
            e(f"s_cselect_b32 s{sT1}, {NP}, 0")
            e(f"s_sub_u32 s{sKW2}, s{sKW2}, s{sT1}")
    else:
        e(f"s_mov_b32 s{sKW}, {NN-1}")
        e(f"s_mov_b32 s{sKW2}, {NP-1}")
    e(f"s_mov_b32 s{sKH}, s{sKW}")
    e(f"s_mov_b32 s{sKH2}, s{sKW2}")
    e(f"v_lshlrev_b32 v{vWL}, 4, v1")
    e(f"v_add_u32 v{vWL2}, 4096, v{vWL}")
    for t in range(4):
        e(f"s_add_u32 s{sT0}, s3, {t}")
        e(f"s_and_b32 s{sT0}, s{sT0}, 3")
        e(f"s_lshl_b32 s{sT1}, s{sT0}, 10")
        e(f"v_add_u32 v{vHL+t}, s{sT1}, v{vWL}")
        if t > 0:
            e(f"s_mul_i32 s{sT1}, s{sT0}, 15360")
            e(f"s_add_u32 s{sT1}, s{sT1}, {(t-1)*5120}")
            e(f"v_add_u32 v{vRW+t-1}, s{sT1}, v{vWL}")
    e(f"s_mul_i32 s{sT1}, s3, 15360")
    e(f"v_add_u32 v{vRR}, s{sT1}, v{vWL}")
    e("v_and_b32 v2, 15, v1")
    e("v_mul_u32_u24 v2, 1280, v2")
    e("v_lshrrev_b32 v3, 4, v1")
    e(f"v_lshl_add_u32 v{vOS}, v3, 3, v2")
    e(f"s_lshl_b32 s{sT0}, s{sT64}, 2")
    e(f"s_add_u32 s{sT0}, s{sT0}, s3")
    e(f"s_mul_i32 s{sOO}, s{sT0}, {16*1280}")
    e(f"s_mul_i32 s{sT1}, s{sD80}, 160")
    e(f"s_add_u32 s{sOO}, s{sOO}, s{sT1}")
    e(f"v_min_u32 v2, 13, v1")
    e(f"s_lshr_b32 s{sT1}, s3, 1")
    e(f"v_lshl_add_u32 v2, v2, 1, s{sT1}")
    e(f"v_min_u32 v2, 26, v2")
    e(f"s_lshl_b32 s{sT0}, s{sT64}, 12")
    e(f"s_add_u32 s{sT0}, s{sT0}, {FLAG_OFF}")
    e(f"v_lshl_add_u32 v{vFL}, v2, 7, s{sT0}")
    e(f"v_min_u32 v2, 7, v1")
    e(f"s_lshl_b32 s{sT0}, s{sREG}, 10")
    e(f"s_add_u32 s{sT0}, s{sT0}, {REG_OFF}")
    e(f"v_lshl_add_u32 v{vRG}, v2, 7, s{sT0}")
    e(f"s_lshl_b32 s{sREG}, s{sT64}, 3")
    e(f"s_add_u32 s{sREG}, s{sREG}, s{sD80}")
    e(f"s_lshl_b32 s{sREG}, s{sREG}, 7")
    e(f"s_add_u32 s{sREG}, s{sREG}, {REG_OFF}")
    e(f"s_cmp_eq_u32 s3, 0")
    e(f"s_cselect_b32 s{sREG}, s{sREG}, {BIG}")
    e(f"v_min_u32 v2, {2*NP-1}, v1")
    e(f"v_lshrrev_b32 v3, 1, v2")
    e(f"v_lshl_add_u32 v3, v3, 2, s3")
    e(f"v_min_u32 v3, {4*NP-3}, v3")
    e(f"v_mul_u32_u24 v3, 10, v3")
    e(f"v_and_b32 v2, 1, v2")
    e(f"s_mul_i32 s{sT0}, s{sD80}, 5")
    e(f"s_lshr_b32 s{sT0}, s{sT0}, 2")
    e(f"v_add3_u32 v2, v2, v3, s{sT0}")
    e(f"v_lshlrev_b32 v2, 7, v2")
    e(f"v_add_u32 v{vFW}, {W2F_OFF}, v2")
    for j in range(5):
        e(f"v_add_u32 v2, {64*j}, v1")
        e(f"v_mul_u32_u24 v3, 205, v2")
        e(f"v_lshrrev_b32 v3, 11, v3")
        e(f"v_mul_u32_u24 v4, {1280-160}, v3")
        e(f"v_lshl_add_u32 v4, v2, 4, v4")
        if j in (1, 2, 3):
            e(f"v_subrev_u32 v{vWD+j}, {1024*j}, v4")
        elif j == 4:
            e(f"v_mov_b32 v{vWD+4}, v4")
        else:
            e(f"v_mov_b32 v{vWD}, v4")
    e("v_lshrrev_b32 v2, 5, v1")
    e("v_bfe_u32 v3, v1, 4, 1")
    e("v_bfe_u32 v4, v1, 2, 2")
    e("v_lshlrev_b32 v2, 4, v2")
    e("v_lshl_add_u32 v2, v3, 2, v2")
    e("v_add_u32 v2, v2, v4")
    e("v_mul_u32_u24 v2, 160, v2")
    e("v_and_b32 v3, 3, v1")
    e("v_lshl_add_u32 v2, v3, 3, v2")
    e(f"v_add_u32 v{vWT}, s{sWM}, v2")
    e(f"v_add_u32 v{vWT+1}, 61440, v{vWT}")
    e(f"v_add_u32 v{vWT+2}, 122880, v{vWT}")
    e(f"v_lshlrev_b32 v{vZ}, 24, v1")
    e("v_mov_b32 v9, 0")


wq = [(i, dt) for i in range(14) for dt in range(5)]
wpos = [0]


def adv(sk, so, sb, stride, mod, add=0, bad=False):
    e(f"s_add_u32 s{sk}, s{sk}, 1")
    e(f"s_cmp_eq_u32 s{sk}, {mod}")
    e(f"s_cselect_b32 s{sk}, 0, s{sk}")
    e(f"s_mul_i32 s{so}, s{sk}, {stride}")
    e(f"s_add_u32 s{so}, s{so}, s{sb}")
    if add:
        e(f"s_add_u32 s{so}, s{so}, {add}")
    if bad:
        e(f"s_cmp_eq_u32 s{sk}, s{sBADK}")
        e(f"s_cselect_b32 s{so}, {BIG}, s{so}")


trpos = [0]
ppos = [NN * 5]


def w_dma(n, lim=14):
    for _ in range(n):
        if wpos[0] >= NN * 5:
            return
        i, j = wq[wpos[0]]
        if i >= lim:
            return
        if j == 0:
            adv(sKW, sP2W, sPWB, 163840, NN)
            e(f"s_add_u32 m0, s{sWM}, {i*20480}")
            e("s_nop 0")
        if j == 4:
            e(f"s_add_u32 m0, s{sWM}, {i*20480+4096}")
            e("s_nop 0")
        wpos[0] += 1
        e.vmem(f"buffer_load_dwordx4 v{vWD+j}, {S(SW2)}, s{sP2W} offen offset:{1024*(j&3)} lds", ("W", i))


def w_tr(n):
    for _ in range(n):
        i, r = divmod(trpos[0], 10)
        if i >= NN:
            return
        assert wpos[0] >= (i + 1) * 5
        if r == 0:
            e.vmwait(lambda t: t == ("W", i))
        dt, q = divmod(r, 2)
        off = (i % 3) * 20480 + dt * 32 + q * 1280
        e.lds(f"ds_read_b64_tr_b16 {wreg2(i,dt,q)}, v{vWT+i//3} offset:{off}", ("T", i, dt))
        trpos[0] += 1


def w_loads(n):
    for _ in range(n):
        if ppos[0] >= 70:
            return
        i, dt = wq[ppos[0]]
        ppos[0] += 1
        if dt == 0:
            adv(sKW2, sP2W, sPPB, 163840, NP, bad=True)
        if dt < 4:
            e.vmem(f"buffer_load_dwordx4 {wreg(i,dt)}, v{vWL}, {S(SWS)}, s{sP2W} offen offset:{dt*1024} sc1", ("W", i))
        else:
            e.vmem(f"buffer_load_dwordx4 {wreg(i,dt)}, v{vWL2}, {S(SWS)}, s{sP2W} offen sc1", ("W", i))


def h_loads(i, tsel=None):
    for t in (range(4) if tsel is None else [tsel]):
        so = sHS[i % 6]
        if t == 0:
            if i < NN:
                adv(sKH, so, sPHB, 16384, NN)
            else:
                adv(sKH2, so, sPHB, 16384, NP, add=NN * 16384, bad=True)
        b = HR + (i % NHR) * 16 + t * 4
        e.vmem(f"buffer_load_dwordx4 {V(b)}, v{vHL+t}, {S(SWS)}, s{so} offen sc1", ("H", i, t))


def spin(name, voff, reg, srdb, cmp_nonce=True, slp=None):
    e.vmwait(lambda t: t == ("P", name))
    e(f"s_mov_b32 s{sCNT}, 0")
    e.label(f"L_spin_{name}")
    if cmp_nonce:
        e(f"v_cmp_eq_u64 vcc, s[{sNON}:{sNON+1}], v[{reg}:{reg+1}]")
    else:
        e(f"v_cmp_ne_u64 vcc, 0, v[{reg}:{reg+1}]")
    e(f"s_add_u32 s{sCNT}, s{sCNT}, 1")
    e("s_cmp_eq_u64 vcc, exec")
    e(f"s_cbranch_scc1 L_ok_{name}")
    e(f"s_cmp_ge_u32 s{sCNT}, {SPIN}")
    e(f"s_cbranch_scc1 L_ok_{name}")
    e(f"s_sleep {A.sleep if slp is None else slp}")
    e(f"buffer_load_dwordx2 v[{reg}:{reg+1}], v{voff}, {S(srdb)}, 0 offen sc1")
    e("s_waitcnt vmcnt(0)")
    e(f"s_branch L_spin_{name}")
    e.label(f"L_ok_{name}")


def poll_issue(name, voff, reg, srdb):
    e.vmem(f"buffer_load_dwordx2 v[{reg}:{reg+1}], v{voff}, {S(srdb)}, 0 offen sc1", ("P", name))


def get_nonce(tag, slp=None):
    e.vmwait(lambda t: t == ("P", tag))
    e(f"s_mov_b32 s{sCNT}, 0")
    e.label(f"L_spin_{tag}")
    e(f"v_readfirstlane_b32 s{sNON}, v4")
    e(f"v_readfirstlane_b32 s{sNON+1}, v5")
    e(f"s_add_u32 s{sCNT}, s{sCNT}, 1")
    e(f"s_cmp_lg_u32 s{sNON+1}, 0")
    e(f"s_cbranch_scc1 L_ok_{tag}")
    e(f"s_cmp_ge_u32 s{sCNT}, {SPIN}")
    e(f"s_cbranch_scc1 L_ok_{tag}")
    e(f"s_sleep {A.sleep if slp is None else slp}")
    e(f"buffer_load_dwordx2 v[4:5], v9, {S(SDBG)}, 0 offen sc1")
    e("s_waitcnt vmcnt(0)")
    e(f"s_branch L_spin_{tag}")
    e.label(f"L_ok_{tag}")
    e("s_nop 1")
    set_exp()


p2bar = []


def phase2_main():
    HD = A.hd
    L = A.tl
    I0 = 14 - L
    order = [(i, t) for i in range(I0) for t in range(4)]
    order += [(i, t) for t in (1, 2, 3, 0) for i in range(I0, 14)]
    hq = list(order)
    hso = set()

    cur = [0]
    owe = [0]

    def h_next():
        owe[0] += 1
        while owe[0] and h_one():
            owe[0] -= 1

    def h_one():
        if not hq:
            return False
        i, t = hq[0]
        if i >= NHR and order.index((i - NHR, t)) >= cur[0]:
            return False
        hq.pop(0)
        if i not in hso:
            for j in range(14):
                if j not in hso and j <= (i if i < I0 else 13):
                    hso.add(j)
                    so = sHS[j % 6]
                    if j < NN:
                        adv(sKH, so, sPHB, 16384, NN)
                    else:
                        adv(sKH2, so, sPHB, 16384, NP, add=NN * 16384, bad=True)
        b = HR + (i % NHR) * 16 + t * 4
        e.vmem(f"buffer_load_dwordx4 {V(b)}, v{vHL+t}, {S(SWS)}, s{sHS[i%6]} offen sc1", ("H", i, t))
        return True

    for _ in range(4 * HD):
        h_next()
    e.ts()
    wseen = set()
    pend = []
    R = 0
    nred = [0]
    for gi, (i, t) in enumerate(order):
        cur[0] = gi
        assert (i, t) not in hq
        e.vmwait(lambda g: g == ("H", i, t) or g == ("W", i))
        if i not in wseen:
            wseen.add(i)
            assert i >= NN or trpos[0] >= (i + 1) * 10
            assert ppos[0] >= (i + 1) * 5
            e.lgwait(lambda g: g[0] == "T" and g[1] == i)
        hb = HR + (i % NHR) * 16 + t * 4
        k = gi - 4 * I0
        for dt in range(5):
            d = ACC2 + (t * 5 + dt) * 4
            c = "0" if i == 0 else V(d)
            e(f"v_mfma_f32_16x16x32_bf16 {V(d)}, {wreg(i,dt)}, {V(hb)}, {c}")
            if dt == 1:
                h_next()
            if dt >= 2:
                w_tr(1)
            if dt == 3:
                w_loads(1)
            if pend and (dt == 4 or (dt == 2 and k % L > 0)):
                assert p2bar
                pt, pd = pend.pop(0)
                e.lds(f"ds_write_b128 v{vRW+pt-1}, {V(ACC2+(pt*5+pd)*4)} offset:{pd*1024}", ("RW",))
                if not pend and pt == 3:
                    nred[0] = 1
            elif nred[0] == 1 and dt == 4:
                nred[0] = 2
                e("s_waitcnt lgkmcnt(0)")
                e.lg = []
                e("s_barrier")
                for j in range(3):
                    for d2 in range(5):
                        e.lds(f"ds_read_b128 {V(RB[j*5+d2])}, v{vRR} offset:{j*5120+d2*1024}", ("RR", j, d2))
        if k >= 0 and k % L == L - 1 and t != 0:
            pend += [(t, dt) for dt in range(5)]
        if trpos[0] == NN * 10 and not p2bar:
            p2bar.append(1)
            e.lgwait(lambda g: g[0] == "T")
            e("s_barrier")
    assert ppos[0] == 70 and trpos[0] == NN * 10 and p2bar and not pend and nred[0] == 2
    e.ts()
    e("s_nop 7")
    for dt in range(5):
        d = ACC2 + dt * 4
        for j in range(3):
            e.lgwait(lambda g: g == ("RR", j, dt))
            for r in range(0, 4, 2):
                s_ = RB[j * 5 + dt] + r
                e(f"v_pk_add_f32 v[{d+r}:{d+r+1}], v[{d+r}:{d+r+1}], v[{s_}:{s_+1}]")
        O = RB[dt]
        e(f"v_cvt_pk_bf16_f32 v{O}, v{d}, v{d+1}")
        e(f"v_cvt_pk_bf16_f32 v{O+1}, v{d+2}, v{d+3}")
        e.vmem(f"buffer_store_dwordx2 v[{O}:{O+1}], v{vOS}, {S(SOUT)}, s{sOO} offen offset:{dt*32}", ("O",))
    e.ts()


RB = [ACC2 + 20 + 4 * k for k in range(15)]


def diag_dump():
    if not A.diag:
        return
    e("s_waitcnt lgkmcnt(0)")
    if A.diag == 2:
        e(f"s_cmp_lg_u32 s3, 0")
        e("s_cbranch_scc1 L_end")
        e(f"s_cmp_ge_u32 s{sSLOT}, 28")
        e("s_cbranch_scc1 L_end")
        e("v_mov_b32 v2, 0")
        for k in range(14):
            e(f"s_sub_u32 s{sT0}, s{64+2*k}, s{sNON}")
            e(f"v_writelane_b32 v2, s{sT0}, {k}")
        e("v_lshlrev_b32 v3, 2, v1")
        e("v_add_u32 v3, 8, v3")
        e("v_cmp_gt_u32 vcc, 14, v1")
        e("v_mov_b32 v4, 0x1000000")
        e("v_cndmask_b32 v3, v4, v3, vcc")
        e(f"buffer_atomic_add v2, v3, {S(SDBG)}, 0 offen sc1")
        return
    e(f"s_lshl_b32 s{sT0}, s2, 2")
    e(f"s_add_u32 s{sT0}, s{sT0}, s3")
    e(f"s_lshl_b32 s{sT0}, s{sT0}, 8")
    e(f"s_add_u32 s{sT0}, s{sT0}, {DIAG_OFF}")
    for k in range(16):
        e(f"v_mov_b32 v2, s{64+2*k}")
        e(f"v_mov_b32 v3, s{65+2*k}")
        e(f"buffer_store_dwordx2 v[2:3], v{vZ}, {S(SWS)}, s{sT0} offen offset:{8*k}")
        e("s_nop 1")


def dma(it, part):
    st = it % NS
    if A.split:
        if part == 0:
            e(f"s_add_u32 m0, s{sLDSW}, {st*32768}")
            if it > 0:
                e(f"s_add_u32 s{sKB}, s{sKB}, 1")
                e(f"s_cmp_eq_u32 s{sKB}, 10")
                e(f"s_cselect_b32 s{sKB}, 0, s{sKB}")
            e(f"s_mul_i32 s{sXO}, s{sKB}, s{sWB}")
            e(f"s_add_u32 s{sXO}, s{sXO}, s{sXB}")
        if part == 4:
            e(f"s_add_u32 m0, s{sLDSW}, {st*32768+4096}")
            e(f"s_add_u32 s{sXO}, s{sXO}, s{sWO}")
        e.vmem(f"buffer_load_dwordx4 v{vX+(part&3)}, {S(SX)}, s{sXO} offen offset:{1024*(part&3)} lds", ("D", it))
        return
    if part == 0:
        e(f"s_add_u32 m0, s{sLDSW}, {st*32768}")
        if it > 0:
            e(f"s_add_u32 s{sKB}, s{sKB}, 1")
            e(f"s_cmp_eq_u32 s{sKB}, 10")
            e(f"s_cselect_b32 s{sKB}, 0, s{sKB}")
        e(f"s_lshl_b32 s{sXO}, s{sKB}, 7")
        e(f"s_add_u32 s{sXO}, s{sXO}, s{sXB}")
    if part == 4:
        e(f"s_add_u32 m0, s{sLDSW}, {st*32768+16384}")
        e(f"s_mul_i32 s{sWO}, s{sKB}, {64*3456}")
        e(f"s_add_u32 s{sWO}, s{sWO}, s{sWB}")
    if part < 4:
        e.vmem(f"buffer_load_dwordx4 v{vX+part}, {S(SX)}, s{sXO} offen offset:{1024*part} lds", ("D", it))
    else:
        e.vmem(f"buffer_load_dwordx4 v{vW+part-4}, {S(SW1)}, s{sWO} offen offset:{1024*(part-4)} lds", ("D", it))


def frag_reads(n, half):
    it, ks = divmod(n, 4)
    st = it % NS
    j, so = st >> 1, (st & 1) * 32768
    f = FR[n & 1]
    ft = tt = half
    for q in range(2):
        e.lds(f"ds_read_b64_tr_b16 v[{f+ft*4+2*q}:{f+ft*4+2*q+1}], v{vAa+j*2+ft} offset:{so+ks*4096+q*1024}", ("A", n, ft))
    e.lds(f"ds_read_b128 {V(f+8+tt*4)}, v{vB+j*4+ks} offset:{so+tt*4096}", ("B", n, tt))


def mfma1(n, ft, tt):
    f = FR[n & 1]
    a = acc(ft, tt)
    c = "0" if n == 0 else V(a, 16)
    e(f"v_mfma_f32_32x32x16_bf16 {V(a,16)}, {V(f+ft*4)}, {V(f+8+tt*4)}, {c}")


def gemm_role():
    if A.map1 == 47:
        e(f"s_mul_i32 s{sT0}, s{sSLOT}, 37")
        e(f"s_lshr_b32 s{sT0}, s{sT0}, 8")
        e(f"s_mul_i32 s{sT1}, s{sT0}, 7")
        e(f"s_sub_u32 s{sT1}, s{sSLOT}, s{sT1}")
        if A.rot1:
            e(f"s_mul_i32 s{sKB}, s{sT1}, 3")
            e(f"s_mul_i32 s{sT2}, s{sT0}, 5")
            e(f"s_lshr_b32 s{sT2}, s{sT2}, 1")
            e(f"s_add_u32 s{sKB}, s{sKB}, s{sT2}")
            e(f"s_lshr_b32 s{sT2}, s{sXCD}, 1")
            e(f"s_add_u32 s{sKB}, s{sKB}, s{sT2}")
            e(f"s_and_b32 s{sT2}, s{sXCD}, 1")
            e(f"s_add_u32 s{sKB}, s{sKB}, s{sT2}")
        e(f"s_lshr_b32 s{sRB}, s{sXCD}, 1")
        e(f"s_lshl_b32 s{sRB}, s{sRB}, 2")
        e(f"s_add_u32 s{sRB}, s{sRB}, s{sT0}")
        e(f"s_and_b32 s{sNT}, s{sXCD}, 1")
        e(f"s_mul_i32 s{sNT}, s{sNT}, 7")
        e(f"s_add_u32 s{sNT}, s{sNT}, s{sT1}")
    else:
        e(f"s_cmp_ge_u32 s{sSLOT}, 14")
        e(f"s_cselect_b32 s{sT0}, 1, 0")
        e(f"s_cselect_b32 s{sT1}, 14, 0")
        e(f"s_sub_u32 s{sNT}, s{sSLOT}, s{sT1}")
        e(f"s_lshl_b32 s{sRB}, s{sXCD}, 1")
        e(f"s_add_u32 s{sRB}, s{sRB}, s{sT0}")
        if A.rot1:
            e(f"s_mul_i32 s{sKB}, s{sNT}, 3")
            e(f"s_mul_i32 s{sT2}, s{sT0}, 5")
            e(f"s_add_u32 s{sKB}, s{sKB}, s{sT2}")
            e(f"s_add_u32 s{sKB}, s{sKB}, s{sXCD}")
    if A.rot1:
        e(f"s_mul_i32 s{sT2}, s{sKB}, 205")
        e(f"s_lshr_b32 s{sT2}, s{sT2}, 11")
        e(f"s_mul_i32 s{sT2}, s{sT2}, 10")
        e(f"s_sub_u32 s{sKB}, s{sKB}, s{sT2}")
    else:
        e(f"s_mov_b32 s{sKB}, 0")
    if A.split:
        e(f"s_lshl_b32 s{sLDSW}, s3, 13")
        e(f"s_lshl_b32 s{sT0}, s{sRB}, 1")
        e(f"s_add_u32 s{sT0}, s{sT0}, s3")
        e(f"s_mul_i32 s{sXB}, s{sT0}, {64*1280}")
        e(f"s_and_b32 s{sT1}, s3, 1")
        e(f"s_mul_i32 s{sT1}, s{sT1}, {32*3456}")
        e(f"s_lshl_b32 s{sT0}, s{sNT}, 8")
        e(f"s_add_u32 s{sT1}, s{sT1}, s{sT0}")
        e(f"s_cmp_ge_u32 s3, 2")
        e(f"s_cselect_b32 s{sXB}, s{sT1}, s{sXB}")
        e(f"s_mov_b32 s{sWB}, 128")
        e(f"s_mov_b32 s{sWO}, {32*1280}")
        e(f"s_cselect_b32 s{sWB}, {64*3456}, s{sWB}")
        e(f"s_cselect_b32 s{sWO}, {16*3456}, s{sWO}")
    else:
        e(f"s_lshl_b32 s{sLDSW}, s3, 12")
        e(f"s_lshl_b32 s{sT0}, s{sRB}, 2")
        e(f"s_add_u32 s{sT0}, s{sT0}, s3")
        e(f"s_mul_i32 s{sXB}, s{sT0}, {32*1280}")
        e(f"s_mul_i32 s{sWB}, s3, {16*3456}")
        e(f"s_lshl_b32 s{sT0}, s{sNT}, 8")
        e(f"s_add_u32 s{sWB}, s{sWB}, s{sT0}")
    e("v_lshrrev_b32 v2, 3, v1")
    e("v_mul_u32_u24 v2, 1280, v2")
    e("v_and_b32 v3, 7, v1")
    e("v_lshrrev_b32 v4, 4, v1")
    e("v_xor_b32 v5, v3, v4")
    e("v_xor_b32 v6, 4, v5")
    e("v_lshl_add_u32 v5, v5, 4, v2")
    e("v_lshl_add_u32 v6, v6, 4, v2")
    for i in range(4):
        e(f"v_add_u32 v{vX+i}, {i*(10240-1024)}, v{5+(i&1)}")
    e("v_mul_u32_u24 v2, 3456, v4")
    e("v_and_b32 v3, 15, v1")
    e("v_lshlrev_b32 v5, 2, v4")
    e("v_xor_b32 v3, v3, v5")
    e("v_lshl_add_u32 v2, v3, 4, v2")
    for i in range(4):
        e(f"v_add_u32 v{vW+i}, {i*(13824-1024)}, v2")
    if A.split:
        e(f"s_cmp_ge_u32 s3, 2")
        e(f"s_cselect_b64 vcc, -1, 0")
        for i in range(4):
            e(f"v_cndmask_b32 v{vX+i}, v{vX+i}, v{vW+i}, vcc")
        e("s_waitcnt lgkmcnt(0)")
        e(f"s_cselect_b64 s[{SX}:{SX+1}], s[6:7], s[4:5]")
        e(f"s_mov_b32 s{SX+2}, {2048*1280}")
        e(f"s_cselect_b32 s{SX+2}, {640*3456}, s{SX+2}")
        e(f"s_mov_b32 s{SX+3}, 0x00020000")
    else:
        e("s_waitcnt lgkmcnt(0)")
        srd(SX, 4, 2048 * 1280)
        srd(SW1, 6, 640 * 3456)
    allq = [(it, p) for it in range(NIT) for p in range(8)]
    for _ in range(min(A.P, 10)):
        dma(*allq.pop(0))
    srd(SWS, 14, WS_SIZE)
    srd(SOUT, 10, 2048 * 1280)
    srd(SDBG, 12, 256)
    e(f"s_mov_b32 s10, {1728*1280}")
    e(f"s_mov_b32 s11, 0x00020000")
    if A.pf:
        code_prefetch()
    e("v_and_b32 v2, 31, v1")
    e("v_lshrrev_b32 v3, 5, v1")
    e("v_bfe_u32 v4, v1, 1, 3")
    e(f"s_and_b32 s{sT0}, s3, 1")
    e(f"s_lshr_b32 s{sT1}, s3, 1")
    e(f"s_lshl_b32 s{sT2}, s{sT0}, 13")
    e(f"v_lshl_add_u32 v2, v2, 7, s{sT2}")
    for ks in range(4):
        e(f"v_or_b32 v5, {2*ks}, v3")
        e("v_xor_b32 v5, v5, v4")
        e(f"v_lshl_add_u32 v{vB+ks}, v5, 4, v2")
    nj = (NS + 1) // 2
    for j in range(1, nj):
        for ks in range(4):
            e(f"v_add_u32 v{vB+j*4+ks}, {j*65536}, v{vB+ks}")
    e("v_bfe_u32 v2, v1, 2, 2")
    e("v_lshl_add_u32 v5, v3, 3, v2")
    e("v_lshlrev_b32 v5, 8, v5")
    e("v_and_b32 v6, 1, v1")
    e("v_lshl_add_u32 v5, v6, 3, v5")
    e("v_add_u32 v5, 16384, v5")
    e("v_bfe_u32 v6, v1, 4, 1")
    e("v_bfe_u32 v7, v1, 1, 1")
    e("v_lshl_add_u32 v6, v6, 1, v7")
    e(f"s_lshl_b32 s{sT2}, s{sT1}, 3")
    e(f"v_or_b32 v6, s{sT2}, v6")
    e("v_lshlrev_b32 v2, 2, v2")
    for ft in range(2):
        e(f"v_or_b32 v7, {4*ft}, v6")
        e("v_xor_b32 v7, v7, v2")
        e(f"v_lshl_add_u32 v{vAa+ft}, v7, 4, v5")
    for j in range(1, nj):
        for ft in range(2):
            e(f"v_add_u32 v{vAa+j*2+ft}, {j*65536}, v{vAa+ft}")
    e("v_bfe_u32 v5, v1, 4, 1")
    e("v_and_b32 v6, 15, v1")
    e("v_lshl_add_u32 v6, v3, 4, v6")
    e("v_lshlrev_b32 v6, 4, v6")
    e(f"v_lshl_add_u32 v{vHS}, v5, 10, v6")
    e(f"s_lshl_b32 s{sT2}, s{sRB}, 1")
    e(f"s_add_u32 s{sT2}, s{sT2}, s{sT0}")
    e(f"s_lshl_b32 s{sT3}, s{sNT}, 1")
    e(f"s_add_u32 s{sT3}, s{sT3}, s{sT1}")
    e(f"s_mov_b32 s{sREG}, s{sT2}")
    e(f"s_lshl_b32 s{sHF}, s{sT2}, 5")
    e(f"s_add_u32 s{sHF}, s{sHF}, s{sT3}")
    e(f"s_lshl_b32 s{sHF}, s{sHF}, 7")
    e(f"s_add_u32 s{sHF}, s{sHF}, {FLAG_OFF}")
    e(f"s_mul_i32 s{sT2}, s{sT2}, 27")
    e(f"s_add_u32 s{sT2}, s{sT2}, s{sT3}")
    e(f"s_lshl_b32 s{sH0}, s{sT2}, 13")
    e(f"s_cmp_ge_u32 s{sT3}, 27")
    e(f"s_cselect_b32 s{sH0}, {BIG}, s{sH0}")
    e(f"s_cselect_b32 s{sHF}, {BIG}, s{sHF}")
    e(f"s_add_u32 s{sH1}, s{sH0}, 4096")
    p2_setup()
    get_xcc()
    for _ in range(A.P - min(A.P, 10)):
        dma(*allq.pop(0))
    if A.pfn < 0:
        w2_prefetch()
    e.ts()
    e.vmwait(lambda t: t == ("D", 0))
    e("s_barrier")
    e.ts()
    frag_reads(0, 0)
    frag_reads(0, 1)
    freed = [NS - 1]
    wlim = [0]
    WLIM = {5: 1, 6: 3, 7: 4, 8: 6}

    pok = [False]

    def filler(slot=0):
        if allq:
            if allq[0][0] <= freed[0]:
                dma(*allq.pop(0))
        elif slot < A.srate and not A.noside:
            w0 = wpos[0]
            w_dma(1, wlim[0])
            if wpos[0] == w0 and pok[0]:
                w_loads(1)
    for it in range(NIT):
        for ks in range(4):
            n = it * 4 + ks
            e.lgwait(lambda t: t in (("A", n, 0), ("B", n, 0)))
            mfma1(n, 0, 0)
            if ks == 3 and it < NIT - 1:
                e.lg = []
                e.vmwait(lambda t: t == ("D", it + 1), "lgkmcnt(0)")
                e("s_barrier")
                freed[0] = it + NS
                wlim[0] = WLIM.get(it, 0)
            if n + 1 < 4 * NIT:
                frag_reads(n + 1, 0)
            e.lgwait(lambda t: t == ("A", n, 1))
            mfma1(n, 1, 0)
            if n + 1 < 4 * NIT:
                frag_reads(n + 1, 1)
            e.lgwait(lambda t: t == ("B", n, 1))
            mfma1(n, 0, 1)
            filler()
            if n >= A.pfn and (n - A.pfn) % A.pfs == 0 and (n - A.pfn) // A.pfs < A.pfp:
                w2_prefetch((n - A.pfn) // A.pfs)
            if it == NIT - 1 and not A.noside:
                w_dma(1, wlim[0])
            if n == A.nn0:
                get_nonce("n1")
            if n == A.zf:
                reg_store()
            if n >= A.qn and (n - A.qn) % A.qs == 0 and (n - A.qn) // A.qs < QP:
                w2p_prefetch((n - A.qn) // A.qs)
            if n == A.rn0:
                if A.loc:
                    poll_issue("r", vRG, vPD, SWS)
            if n == A.rn1:
                comb_decide()
            if n == A.np:
                poll_issue("n1", 9, 4, SDBG)
            if n == A.fn0:
                poll_issue("w2a", vFW, 6, SWS)
            if n == A.fn1:
                spin("w2a", vFW, 6, SWS)
                pok[0] = True
            mfma1(n, 1, 1)
            filler(1)
        if it % 3 == 0 or A.tsm:
            e.ts()

    assert not allq
    e("s_barrier")


def gemm_epilogue_stores():
    e("s_nop 6")
    vm0 = list(e.vm)
    for var in ((0, 1) if A.loc else (1,)):
        e.vm = list(vm0)
        if A.loc and var == 0:
            e(f"s_cmp_lg_u32 s{sLOC}, 0")
            e("s_cbranch_scc1 L_epi_far")
        if A.loc and var == 1:
            e.label("L_epi_far")
        k = 0
        for (ft, tt) in [(0, 0), (1, 0), (0, 1), (1, 1)]:
            a = acc(ft, tt)
            h = HOUT + k * 8
            k += 1
            for c in range(2):
                for p in range(4 * c, 4 * c + 4):
                    e(f"v_cvt_pk_bf16_f32 v{h+p}, v{a+2*p}, v{a+2*p+1}")
                for p in range(4 * c, 4 * c + 4):
                    e(f"v_pk_max_i16 v{h+p}, v{h+p}, 0")
                e.vmem(f"buffer_store_dwordx4 {V(h+4*c)}, v{vHS}, {S(SWS)}, s{sH0+ft} offen offset:{tt*2048+c*512}{' sc1' if var else ''}", ("S",))
        if A.loc and var == 0:
            e("s_branch L_epi_done")
    if A.loc:
        e.label("L_epi_done")


def repack_role():
    sWI, sL = sRB, sLDSW
    e(f"s_sub_u32 s{sWI}, s{sSLOT}, 28")
    e(f"s_lshl_b32 s{sWI}, s{sWI}, 3")
    e(f"s_add_u32 s{sWI}, s{sWI}, s{sXCD}")
    e(f"s_lshl_b32 s{sWI}, s{sWI}, 2")
    e(f"s_add_u32 s{sWI}, s{sWI}, s3")
    e(f"s_mul_i32 s{sL}, s3, {NU*4096}")
    e("v_lshrrev_b32 v2, 3, v1")
    e("v_mul_u32_u24 v2, 1280, v2")
    e("v_and_b32 v3, 7, v1")
    e("v_bfe_u32 v4, v1, 4, 2")
    e("v_lshlrev_b32 v4, 1, v4")
    e("v_xor_b32 v3, v3, v4")
    e("v_lshl_add_u32 v2, v3, 4, v2")
    for i in range(4):
        e(f"v_add_u32 v{vX+i}, {i*(10240-1024)}, v2")
    e("s_waitcnt lgkmcnt(0)")
    srd(SDBG, 12, 256)
    e("s_cmp_lg_u32 s{0}, 124".format(sWI))
    e("s_cbranch_scc1 L_nononce")
    e(f"s_memrealtime s[{sNON}:{sNON+1}]")
    e("s_waitcnt lgkmcnt(0)")
    e(f"s_or_b32 s{sNON+1}, s{sNON+1}, 0x40000000")
    e(f"v_mov_b32 v2, s{sNON}")
    e(f"v_mov_b32 v3, s{sNON+1}")
    e("v_lshlrev_b32 v4, 24, v1")
    e(f"buffer_store_dwordx2 v[2:3], v4, {S(SDBG)}, 0 offen sc1")
    e.label("L_nononce")
    get_xcc()
    srd(SOUT, 10, 2048 * 1280)
    e(f"s_mov_b32 s10, {1728*1280}")
    e(f"s_mov_b32 s11, 0x00020000")
    for k in range(NU):
        e(f"s_add_u32 s{sT0}, s{sWI}, {128*k}")
        e(f"s_mul_i32 s{sT1}, s{sT0}, 205")
        e(f"s_lshr_b32 s{sT1}, s{sT1}, 11")
        e(f"s_mul_i32 s{sT2}, s{sT1}, 10")
        e(f"s_sub_u32 s{sT2}, s{sT0}, s{sT2}")
        e(f"s_mul_i32 s{sT1}, s{sT1}, 40960")
        e(f"s_lshl_b32 s{sT2}, s{sT2}, 7")
        e(f"s_add_u32 s{sT1}, s{sT1}, s{sT2}")
        e(f"s_add_u32 s{sT1}, s{sT1}, {NN*163840}")
        e(f"s_cmp_ge_u32 s{sT0}, {NUNIT}")
        e(f"s_cselect_b32 s{sT1}, {BIG}, s{sT1}")
        e(f"s_add_u32 m0, s{sL}, {k*4096}")
        e("s_nop 0")
        for i in range(4):
            e.vmem(f"buffer_load_dwordx4 v{vX+i}, {S(SW2)}, s{sT1} offen offset:{1024*i} lds", ("R", k))
    srd(SWS, 14, WS_SIZE)
    w2_prefetch()
    if A.pf:
        code_prefetch()
    e("v_lshrrev_b32 v2, 5, v1")
    e("v_bfe_u32 v3, v1, 4, 1")
    e("v_bfe_u32 v4, v1, 2, 2")
    e("v_lshlrev_b32 v2, 4, v2")
    e("v_lshl_add_u32 v2, v3, 2, v2")
    e("v_add_u32 v2, v2, v4")
    e("v_lshlrev_b32 v2, 7, v2")
    e("v_and_b32 v5, 1, v1")
    e("v_lshl_add_u32 v2, v5, 3, v2")
    e(f"v_add_u32 v2, s{sL}, v2")
    e("v_lshrrev_b32 v4, 1, v4")
    e("v_lshl_add_u32 v3, v3, 1, v4")
    e("v_lshlrev_b32 v3, 1, v3")
    e("v_bfe_u32 v5, v1, 1, 1")
    for b in range(4):
        e(f"v_xor_b32 v6, {2*b}, v3")
        e("v_or_b32 v6, v6, v5")
        e(f"v_lshl_add_u32 v{vW+b}, v6, 4, v2")
    e(f"s_mov_b32 s{sREG}, 0")
    p2_setup()
    poll_issue("n2", 9, 4, SDBG)
    e.ts()
    R = 24
    for k in range(NU):
        e.vmwait(lambda t: t == ("R", k))
        for b in range(4):
            r = R + (k * 4 + b) * 4
            for q in range(2):
                e.lds(f"ds_read_b64_tr_b16 v[{r+2*q}:{r+2*q+1}], v{vW+b} offset:{k*4096+q*1024}", ("T", k, b))
        e(f"s_add_u32 s{sT0}, s{sWI}, {128*k}")
        e(f"s_lshl_b32 s{sT1}, s{sT0}, 12")
        e(f"s_add_u32 s{sT1}, s{sT1}, {W2P_OFF}")
        e(f"s_cmp_ge_u32 s{sT0}, {NUNIT}")
        e(f"s_cselect_b32 s{sT1}, {BIG}, s{sT1}")
        for b in range(4):
            r = R + (k * 4 + b) * 4
            e.lgwait(lambda t: t == ("T", k, b))
            e.vmem(f"buffer_store_dwordx4 {V(r)}, v{vWL}, {S(SWS)}, s{sT1} offen offset:{b*1024} sc1", ("S", k))
        if k == 0:
            get_nonce("n2")
    e.ts()
    for k in range(NU):
        e.vmwait(lambda t: t == ("S", k))
        e(f"s_add_u32 s{sT0}, s{sWI}, {128*k}")
        e(f"s_lshl_b32 s{sT1}, s{sT0}, 7")
        e(f"s_add_u32 s{sT1}, s{sT1}, {W2F_OFF}")
        e(f"s_cmp_ge_u32 s{sT0}, {NUNIT}")
        e(f"s_cselect_b32 s{sT1}, {BIG}, s{sT1}")
        e.vmem(f"buffer_store_dwordx2 v[2:3], v{vZ}, {S(SWS)}, s{sT1} offen sc1", ("F", k))
    reg_store()
    e.ts()
    e("s_barrier")


def kdesc(name):
    return f""".amdhsa_kernel {name}
  .amdhsa_next_free_vgpr 512
  .amdhsa_next_free_sgpr 102
  .amdhsa_accum_offset 256
  .amdhsa_group_segment_fixed_size 0
  .amdhsa_kernarg_size 48
  .amdhsa_user_sgpr_count 2
  .amdhsa_user_sgpr_kernarg_segment_ptr 1
  .amdhsa_system_sgpr_workgroup_id_x 1
.end_amdhsa_kernel"""


LDS = max(NS * 32768, 81920)
hdr = [f"; @launch grid=(256,1,1) block=(256,1,1) lds={LDS}",
       '.amdgcn_target "amdgcn-amd-amdhsa--gfx950"', ".text"]

e.l.append(f".globl {KN}\n.p2align 8\n.type {KN},@function\n{KN}:")
e("s_load_dwordx8 s[4:11], s[0:1], 0")
e(f"s_getpc_b64 s[{sPC}:{sPC+1}]")
e.label("L_pc")
e("s_load_dwordx4 s[12:15], s[0:1], 32")
e(f"s_cmp_ge_u32 s2, 256")
e(f"s_cbranch_scc1 L_end")
e("v_and_b32 v1, 63, v0")
e("v_lshrrev_b32 v2, 6, v0")
e(f"s_and_b32 s{sXCD}, s2, 7")
e("v_readfirstlane_b32 s3, v2")
e(f"s_lshr_b32 s{sSLOT}, s2, 3")
e.ts()
e(f"s_cmp_ge_u32 s{sSLOT}, 28")
e("s_cbranch_scc1 L_repack")
gemm_role()
w_dma(70)
if A.rn1 >= 40:
    comb_decide()
gemm_epilogue_stores()
e.ts()
if A.fn1 >= 40:
    spin("w2a", vFW, 6, SWS)
for b in range(A.wpre):
    w_loads(1)
    w_tr(3)
e.vmwait(lambda t: t == ("S",))
h_flag_store()
e.ts()
w_loads(70 - ppos[0] - A.wlate)
e.ts()
nts_join = e.nts
vm_join = list(e.vm)
lg_join = list(e.lg)
tr_join = trpos[0]
pp_join = ppos[0]
e("s_branch L_join")
e.label("L_repack")
e.vm = []
e.lg = []
e.nts = 1
wpos[0] = 0
trpos[0] = 0
ppos[0] = NN * 5
repack_role()
if not A.sord:
    w_dma(70)
poll_issue("w2b", vFW, 6, SWS)
spin("w2b", vFW, 6, SWS, slp=A.ssleep)
e.ts()
w_loads(pp_join - NN * 5)
if A.sord:
    w_dma(70)
w_tr(tr_join)
assert trpos[0] == tr_join and ppos[0] == pp_join
e("s_waitcnt vmcnt(0) lgkmcnt(0)")
while e.nts < nts_join and not A.tsm:
    e.ts()
e.vm = vm_join
e.lg = lg_join
if A.tsm:
    e.nts = 13
e.label("L_join")
poll_issue("h", vFL, 6, SWS)
w_loads(A.wlate)
w_tr(10 * A.wjoin - trpos[0])
spin("h", vFL, 6, SWS)
e.ts()
phase2_main()
diag_dump()
e.label("L_end")
e.label("L_codeend")
e("s_endpgm")

body = "\n".join(e.l)
ninst = sum(1 for x in e.l if x.startswith("    "))
npf = (ninst * 8 + 8191) // 8192
pf = "\n".join(f"    s_min_u32 s{sT0}, s{sJ}, L_codeend-L_pc\n    s_load_dword s63, s[{sPC}:{sPC+1}], s{sT0}\n    s_add_u32 s{sJ}, s{sJ}, 8192" for k in range(npf))
body = body.replace("@@PF@@", pf)
print("\n".join(hdr) + "\n" + body + "\n" + '.section .rodata,"a"\n.p2align 6\n' + kdesc(KN) + "\n")
```

```python
import sys, argparse
ap = argparse.ArgumentParser()
ap.add_argument("--diag", type=int, default=0)
ap.add_argument("--ns", type=int, default=5)
ap.add_argument("--pf", type=int, default=1)
ap.add_argument("--P", type=int, default=20)
ap.add_argument("--rot1", type=int, default=1)
ap.add_argument("--rot2", type=int, default=1)
ap.add_argument("--map1", type=int, default=214)
ap.add_argument("--nn0", type=int, default=24)
ap.add_argument("--nn", type=int, default=6)
ap.add_argument("--wpre", type=int, default=20)
ap.add_argument("--wlate", type=int, default=0)
ap.add_argument("--fn0", type=int, default=36)
ap.add_argument("--trl", type=int, default=0)
ap.add_argument("--wjoin", type=int, default=12)
ap.add_argument("--ssleep", type=int, default=8)
ap.add_argument("--spf", type=int, default=0)
ap.add_argument("--w2pf", type=int, default=1)
ap.add_argument("--pfn", type=int, default=12)
ap.add_argument("--fn1", type=int, default=99)
ap.add_argument("--srate", type=int, default=2)
ap.add_argument("--pfs", type=int, default=1)
ap.add_argument("--pfp", type=int, default=8)
ap.add_argument("--loc", type=int, default=1)
ap.add_argument("--tsm", type=int, default=0)
ap.add_argument("--zn", type=int, default=10)
ap.add_argument("--zs", type=int, default=1)
ap.add_argument("--zf", type=int, default=26)
ap.add_argument("--rn0", type=int, default=35)
ap.add_argument("--rn1", type=int, default=39)
ap.add_argument("--wfirst", type=int, default=10)
ap.add_argument("--w2late", type=int, default=0)
ap.add_argument("--zplain", type=int, default=0)
ap.add_argument("--qn", type=int, default=99)
ap.add_argument("--qs", type=int, default=2)
ap.add_argument("--split", type=int, default=0)
ap.add_argument("--noside", type=int, default=0)
ap.add_argument("--tl", type=int, default=5)
ap.add_argument("--qp", type=int, default=2)
ap.add_argument("--sord", type=int, default=1)
ap.add_argument("--np", type=int, default=2)
ap.add_argument("--hd", type=int, default=3)
ap.add_argument("--sleep", type=int, default=4)
ap.add_argument("--clk", type=str, default="7,11")
ap.add_argument("--spq", type=int, default=0)
ap.add_argument("--spn", type=int, default=0)
ap.add_argument("--efirst", type=int, default=1)
ap.add_argument("--sreg", type=int, default=1)
ap.add_argument("--wp2", type=int, default=0)
ap.add_argument("--wp2s", type=int, default=1)
ap.add_argument("--qh", type=int, default=99)
ap.add_argument("--qsleep", type=int, default=4)
ap.add_argument("--ts2", type=int, default=0)
ap.add_argument("--hfl", type=str, default="sc1")
ap.add_argument("--sfl", type=str, default="")
ap.add_argument("--ofl", type=str, default="")
ap.add_argument("--wil", type=int, default=99)
ap.add_argument("--pfl", type=int, default=8)
A = ap.parse_args()
A.pfp = (A.nn * 10 + A.pfl - 1) // A.pfl
CLK = [int(x) for x in A.clk.split(",")]

KN = "standalone__dense_activation_relu__prompt_kernel"
HP_OFF = 0
W2P_OFF = 0x700000
FLAG_OFF = 0xA00000
W2F_OFF = FLAG_OFF + 0x40000
REG_OFF = FLAG_OFF + 0x60000
DIAG_OFF = 0xB00000
WS_SIZE = 0xC00000
BIG = 0x40000000
NS = A.ns
NIT = 10
NN = A.nn
NP = 14 - NN
NU = (NP * 40 - 20 + 127) // 128
NUNIT = NP * 40 - 20
assert NS == 5 and A.hd < 6
SPIN = 20000


class Em:
    def __init__(s):
        s.l = []
        s.vm = []
        s.lg = []
        s.nts = 0

    def __call__(s, x):
        for y in x.split("\n"):
            s.l.append("    " + y)

    def label(s, x):
        s.l.append(x + ":")

    def vmem(s, x, tag):
        s(x)
        s.vm.append(tag)

    def vmwait(s, pred, also=""):
        idx = -1
        for i, t in enumerate(s.vm):
            if pred(t):
                idx = i
        if idx < 0:
            if also:
                s("s_waitcnt " + also)
            return
        n = min(len(s.vm) - 1 - idx, 63)
        s(f"s_waitcnt vmcnt({n}) {also}".rstrip())
        s.vm = s.vm[len(s.vm) - n:] if n else []

    def lds(s, x, tag):
        s(x)
        s.lg.append(tag)

    def lgwait(s, pred):
        idx = -1
        for i, t in enumerate(s.lg):
            if pred(t):
                idx = i
        if idx < 0:
            return
        n = min(len(s.lg) - 1 - idx, 15)
        s(f"s_waitcnt lgkmcnt({n})")
        s.lg = s.lg[len(s.lg) - n:] if n else []

    def clk(s, k):
        if A.diag:
            s(f"s_memtime s[{92+2*k}:{93+2*k}]")

    def ts(s, force=False):
        if A.ts2 and not force and s.nts > 0:
            return
        if A.diag:
            k = s.nts
            if A.tsm and k >= 13:
                k = 13
                s.nts = 12
            assert k < 14
            s(f"s_memrealtime s[{64+2*k}:{65+2*k}]")
            if k in CLK:
                s.clk(CLK.index(k))
            s.nts += 1


e = Em()

SX, SW1, SWS, SOUT, SDBG = 16, 20, 24, 28, 32
SW2 = 8
sKW, sKH, sPWB, sPHB = 36, 37, 38, 39
sXCD, sSLOT, sRB, sNT, sT0, sT1, sT2, sT3 = 40, 41, 42, 43, 44, 45, 46, 47
sLDSW, sXO, sWO, sH0, sH1 = 48, 49, 50, 51, 52
sT64, sD80, sP2W, sP2H, sCNT = 53, 54, 55, 56, 57
sNON = 58
sPC = 60
sJ = 62
sKB, sXB, sWB, sBADK, sHF, sOO = 96, 97, 98, 99, 100, 101


def srd(b, ptr, size):
    e(f"s_mov_b32 s{b}, s{ptr}")
    e(f"s_mov_b32 s{b+1}, s{ptr+1}")
    e(f"s_mov_b32 s{b+2}, {size}")
    e(f"s_mov_b32 s{b+3}, 0x00020000")


def S(b):
    return f"s[{b}:{b+3}]"


def V(b, n=4):
    return f"v[{b}:{b+n-1}]"


vX, vW = 208, 212
vB, vAa = 216, 228
FR = [24, 40]
ACC = 56
HOUT = 176
vHS = 8
ACC2 = 176
WX = 136
HR = 24
NHR = 6
vWL, vWL2 = 10, 11
vHL = 12
vRW = 16
vRR = 19
vOS = 20
vFL = 21
vFW = 22
vWD = 120
vWT = 125
sWM = 4
sPPB = 5
sKW2, sKH2 = 6, 7
sXCC, sLOC, sPFB = 12, 13, 14
vZ = 23
vEXP = 130
vPD = 132
vRG = 134
vPZ = 136
sHS = [48, 49, 50, 96, 97, 98]
sPO = 15
sREG = 0


def acc(ft, tt):
    return ACC + (tt * 2 + ft) * 16


def wreg(i, dt):
    if i < 12:
        b = (i * 5 + dt) * 4
        return f"a[{b}:{b+3}]"
    b = WX + ((i - 12) * 5 + dt) * 4
    return f"v[{b}:{b+3}]"


def wreg2(i, dt, q):
    if i < 12:
        b = (i * 5 + dt) * 4 + 2 * q
        return f"a[{b}:{b+1}]"
    b = WX + ((i - 12) * 5 + dt) * 4 + 2 * q
    return f"v[{b}:{b+1}]"


def w2_prefetch(k=None):
    if not A.w2pf:
        return
    per = A.pfl
    for kk in (range(A.pfp) if k is None else [k]):
        if kk == 0:
            e(f"s_lshl_b32 s{sPFB}, s{sSLOT}, 2")
            e(f"s_add_u32 s{sPFB}, s{sPFB}, s3")
            e(f"s_mul_i32 s{sPFB}, s{sPFB}, {NN*1280}")
            e(f"v_lshrrev_b32 v128, {(64//per).bit_length()-1}, v1")
            e(f"v_lshlrev_b32 v128, 7, v128")
        else:
            e(f"s_add_u32 s{sPFB}, s{sPFB}, {per*128}")
        e.vmem(f"buffer_load_dword v129, v128, {S(SW2)}, s{sPFB} offen", ("PF",))


def spare_nat_prefetch():
    per = NN * 80
    e(f"s_sub_u32 s{sPFB}, s{sSLOT}, 28")
    e(f"s_lshl_b32 s{sPFB}, s{sPFB}, 2")
    e(f"s_add_u32 s{sPFB}, s{sPFB}, s3")
    e(f"s_mul_i32 s{sPFB}, s{sPFB}, {per*128}")
    e(f"v_lshlrev_b32 v128, 7, v1")
    k = 0
    while k < per:
        if per - k < 64:
            e(f"v_min_u32 v128, {(per-k-1)*128}, v128")
        e.vmem(f"buffer_load_dword v129, v128, {S(SW2)}, s{sPFB} offen", ("PF",))
        k += 64
        if k < per:
            e(f"s_add_u32 s{sPFB}, s{sPFB}, {64*128}")


def spare_pack_prefetch():
    C = (NUNIT + 15) // 16
    e(f"s_lshl_b32 s{sPFB}, s3, 2")
    e(f"s_add_u32 s{sPFB}, s{sPFB}, s{sSLOT}")
    e(f"s_sub_u32 s{sPFB}, s{sPFB}, 28")
    e(f"s_mul_i32 s{sPFB}, s{sPFB}, {C}")
    e(f"v_min_u32 v128, {C-1}, v1")
    e(f"v_add_u32 v128, s{sPFB}, v128")
    e(f"v_min_u32 v128, {NUNIT-1}, v128")
    e(f"v_lshlrev_b32 v128, 7, v128")
    e(f"v_add_u32 v128, {W2F_OFF}, v128")
    poll_issue("w2q", 128, 6, SWS)
    spin("w2q", 128, 6, SWS, slp=A.qsleep)
    e(f"s_lshl_b32 s{sPFB}, s{sPFB}, 5")
    e(f"v_add_u32 v128, s{sPFB}, v1")
    n = C * 32
    k = 0
    while k < n:
        e(f"v_min_u32 v135, {NUNIT*32-1}, v128")
        e(f"v_lshlrev_b32 v135, 7, v135")
        e(f"s_mov_b32 s{sT0}, {W2P_OFF}")
        e.vmem(f"buffer_load_dword v129, v135, {S(SWS)}, s{sT0} offen sc1", ("PF",))
        k += 64
        if k < n:
            if n - k < 64:
                e(f"v_min_u32 v135, {n-k-1}, v1")
                e(f"v_add3_u32 v128, s{sPFB}, v135, {k}" if k <= 64 else f"v_add_u32 v128, {k}, v135\nv_add_u32 v128, s{sPFB}, v128")
            else:
                e(f"v_add_u32 v128, 64, v128")


def get_xcc():
    e(f"s_getreg_b32 s{sXCC}, hwreg(HW_REG_XCC_ID)")
    e(f"s_and_b32 s{sXCC}, s{sXCC}, 15")


LPW = (NUNIT * 32 + 111) // 112
QP = A.qp
QL = (LPW + QP - 1) // QP
assert QL <= 64 or A.qn >= 40


def w2p_prefetch(k):
    if k == 0:
        e(f"s_lshl_b32 s{sJ}, s{sSLOT}, 2")
        e(f"s_add_u32 s{sJ}, s{sJ}, s3")
        e(f"s_mul_i32 s{sJ}, s{sJ}, {QL*QP*128}")
        e(f"s_add_u32 s{sJ}, s{sJ}, {W2P_OFF}")
        e(f"v_min_u32 v135, {QL-1}, v1")
        e(f"v_lshlrev_b32 v135, 7, v135")
    else:
        e(f"s_add_u32 s{sJ}, s{sJ}, {QL*128}")
    e.vmem(f"buffer_load_dword v129, v135, {S(SWS)}, s{sJ} offen sc1", ("PF",))


def w2p_half_prefetch():
    rows = NUNIT // 10
    tot = rows * 160
    per = (tot + 111) // 112
    assert per <= 64
    e(f"s_lshl_b32 s{sJ}, s{sSLOT}, 2")
    e(f"s_add_u32 s{sJ}, s{sJ}, s3")
    e(f"s_mul_i32 s{sJ}, s{sJ}, {per}")
    e(f"v_min_u32 v135, {per-1}, v1")
    e(f"v_add_u32 v135, s{sJ}, v135")
    e(f"v_min_u32 v135, {tot-1}, v135")
    e(f"v_lshrrev_b32 v128, 5, v135")
    e(f"v_mul_u32_u24 v128, 205, v128")
    e(f"v_lshrrev_b32 v128, 10, v128")
    e(f"v_mul_u32_u24 v128, {40960-160*128}, v128")
    e(f"v_lshl_add_u32 v135, v135, 7, v128")
    e(f"s_mov_b32 s{sJ}, {W2P_OFF}")
    e.vmem(f"buffer_load_dword v129, v135, {S(SWS)}, s{sJ} offen sc1", ("PF",))


def set_exp():
    e(f"s_xor_b32 s{sT0}, s{sNON}, s{sXCC}")
    e(f"v_mov_b32 v4, s{sT0}")
    e(f"v_mov_b32 v5, s{sNON+1}")
    e(f"v_mov_b32 v2, s{sNON}")
    e(f"v_mov_b32 v3, s{sNON+1}")


def reg_store():
    if A.loc:
        e.vmem(f"buffer_store_dwordx2 v[4:5], v{vZ}, {S(SWS)}, s{sREG} offen sc1", ("G",))


def comb_decide():
    if not A.loc:
        return
    e.vmwait(lambda t: t == ("P", "r"))
    e(f"v_cmp_ne_u64 vcc, v[4:5], v[{vPD}:{vPD+1}]")
    e(f"s_or_b32 s{sLOC}, vcc_lo, vcc_hi")


def h_flag_store():
    if A.loc:
        e(f"s_cmp_lg_u32 s{sLOC}, 0")
        e("s_cbranch_scc1 L_fl_far")
        e(f"buffer_store_dwordx2 v[2:3], v{vZ}, {S(SWS)}, s{sHF} offen")
        e("s_branch L_fl_done")
        e.label("L_fl_far")
    e.vmem(f"buffer_store_dwordx2 v[2:3], v{vZ}, {S(SWS)}, s{sHF} offen sc1", ("F",))
    if A.loc:
        e.label("L_fl_done")


def code_prefetch():
    e(f"s_lshl_b32 s{sJ}, s{sSLOT}, 2")
    e(f"s_add_u32 s{sJ}, s{sJ}, s3")
    e(f"s_lshl_b32 s{sJ}, s{sJ}, 6")
    e.l.append("@@PF@@")


def p2_setup():
    e(f"s_lshl_b32 s{sT64}, s{sXCD}, 2")
    e(f"s_lshr_b32 s{sT0}, s{sSLOT}, 3")
    e(f"s_add_u32 s{sT64}, s{sT64}, s{sT0}")
    e(f"s_and_b32 s{sD80}, s{sSLOT}, 7")
    e(f"s_mul_i32 s{sPWB}, s3, 40960")
    e(f"s_mul_i32 s{sT0}, s{sD80}, 160")
    e(f"s_add_u32 s{sPWB}, s{sPWB}, s{sT0}")
    e(f"s_mul_i32 s{sWM}, s3, 5120")
    e(f"s_mul_i32 s{sPPB}, s3, 40960")
    e(f"s_mul_i32 s{sT0}, s{sD80}, 5120")
    e(f"s_add_u32 s{sPPB}, s{sPPB}, s{sT0}")
    e(f"s_add_u32 s{sPPB}, s{sPPB}, {W2P_OFF}")
    e(f"s_mul_i32 s{sPHB}, s{sT64}, 54")
    e(f"s_add_u32 s{sPHB}, s{sPHB}, s3")
    e(f"s_lshl_b32 s{sPHB}, s{sPHB}, 12")
    e(f"s_cmp_ge_u32 s3, 2")
    e(f"s_cselect_b32 s{sBADK}, {NP-1}, 99")
    if A.rot2:
        e(f"s_and_b32 s{sT0}, s{sT64}, 3")
        e(f"s_lshl_b32 s{sT1}, s{sT0}, 1")
        e(f"s_add_u32 s{sKW}, s{sT1}, s{sD80}")
        for _ in range(13 // NN):
            e(f"s_cmp_ge_u32 s{sKW}, {NN}")
            e(f"s_cselect_b32 s{sT1}, {NN}, 0")
            e(f"s_sub_u32 s{sKW}, s{sKW}, s{sT1}")
        if A.rot2 == 2:
            e(f"s_mul_i32 s{sT0}, s{sT0}, {NP}")
            e(f"s_add_u32 s{sT0}, s{sT0}, 2")
            e(f"s_lshr_b32 s{sT0}, s{sT0}, 2")
        else:
            e(f"s_lshl_b32 s{sT0}, s{sT0}, 1")
        e(f"s_add_u32 s{sKW2}, s{sT0}, s{sD80}")
        for _ in range(18 // NP):
            e(f"s_cmp_ge_u32 s{sKW2}, {NP}")
            e(f"s_cselect_b32 s{sT1}, {NP}, 0")
            e(f"s_sub_u32 s{sKW2}, s{sKW2}, s{sT1}")
    else:
        e(f"s_mov_b32 s{sKW}, {NN-1}")
        e(f"s_mov_b32 s{sKW2}, {NP-1}")
    e(f"s_mov_b32 s{sKH}, s{sKW}")
    e(f"s_mov_b32 s{sKH2}, s{sKW2}")
    e(f"v_lshlrev_b32 v{vWL}, 4, v1")
    e(f"v_add_u32 v{vWL2}, 4096, v{vWL}")
    for t in range(4):
        e(f"s_add_u32 s{sT0}, s3, {t}")
        e(f"s_and_b32 s{sT0}, s{sT0}, 3")
        e(f"s_lshl_b32 s{sT1}, s{sT0}, 10")
        e(f"v_add_u32 v{vHL+t}, s{sT1}, v{vWL}")
        if t > 0:
            e(f"s_mul_i32 s{sT1}, s{sT0}, 15360")
            e(f"s_add_u32 s{sT1}, s{sT1}, {(t-1)*5120}")
            e(f"v_add_u32 v{vRW+t-1}, s{sT1}, v{vWL}")
    e(f"s_mul_i32 s{sT1}, s3, 15360")
    e(f"v_add_u32 v{vRR}, s{sT1}, v{vWL}")
    e("v_and_b32 v2, 15, v1")
    e("v_mul_u32_u24 v2, 1280, v2")
    e("v_lshrrev_b32 v3, 4, v1")
    e(f"v_lshl_add_u32 v{vOS}, v3, 3, v2")
    e(f"s_lshl_b32 s{sT0}, s{sT64}, 2")
    e(f"s_add_u32 s{sT0}, s{sT0}, s3")
    e(f"s_mul_i32 s{sOO}, s{sT0}, {16*1280}")
    e(f"s_mul_i32 s{sT1}, s{sD80}, 160")
    e(f"s_add_u32 s{sOO}, s{sOO}, s{sT1}")
    e(f"v_min_u32 v2, 13, v1")
    e(f"s_lshr_b32 s{sT1}, s3, 1")
    e(f"v_lshl_add_u32 v2, v2, 1, s{sT1}")
    e(f"v_min_u32 v2, 26, v2")
    e(f"s_lshl_b32 s{sT0}, s{sT64}, 12")
    e(f"s_add_u32 s{sT0}, s{sT0}, {FLAG_OFF}")
    e(f"v_lshl_add_u32 v{vFL}, v2, 7, s{sT0}")
    e(f"v_min_u32 v2, 7, v1")
    e(f"s_lshl_b32 s{sT0}, s{sREG}, 10")
    e(f"s_add_u32 s{sT0}, s{sT0}, {REG_OFF}")
    e(f"v_lshl_add_u32 v{vRG}, v2, 7, s{sT0}")
    e(f"s_lshl_b32 s{sREG}, s{sT64}, 3")
    e(f"s_add_u32 s{sREG}, s{sREG}, s{sD80}")
    e(f"s_lshl_b32 s{sREG}, s{sREG}, 7")
    e(f"s_add_u32 s{sREG}, s{sREG}, {REG_OFF}")
    e(f"s_cmp_eq_u32 s3, 0")
    e(f"s_cselect_b32 s{sREG}, s{sREG}, {BIG}")
    e(f"v_min_u32 v2, {2*NP-1}, v1")
    e(f"v_lshrrev_b32 v3, 1, v2")
    e(f"v_lshl_add_u32 v3, v3, 2, s3")
    e(f"v_min_u32 v3, {4*NP-3}, v3")
    e(f"v_mul_u32_u24 v3, 10, v3")
    e(f"v_and_b32 v2, 1, v2")
    e(f"s_mul_i32 s{sT0}, s{sD80}, 5")
    e(f"s_lshr_b32 s{sT0}, s{sT0}, 2")
    e(f"v_add3_u32 v2, v2, v3, s{sT0}")
    e(f"v_lshlrev_b32 v2, 7, v2")
    e(f"v_add_u32 v{vFW}, {W2F_OFF}, v2")
    for j in range(5):
        e(f"v_add_u32 v2, {64*j}, v1")
        e(f"v_mul_u32_u24 v3, 205, v2")
        e(f"v_lshrrev_b32 v3, 11, v3")
        e(f"v_mul_u32_u24 v4, {1280-160}, v3")
        e(f"v_lshl_add_u32 v4, v2, 4, v4")
        if j in (1, 2, 3):
            e(f"v_subrev_u32 v{vWD+j}, {1024*j}, v4")
        elif j == 4:
            e(f"v_mov_b32 v{vWD+4}, v4")
        else:
            e(f"v_mov_b32 v{vWD}, v4")
    e("v_lshrrev_b32 v2, 5, v1")
    e("v_bfe_u32 v3, v1, 4, 1")
    e("v_bfe_u32 v4, v1, 2, 2")
    e("v_lshlrev_b32 v2, 4, v2")
    e("v_lshl_add_u32 v2, v3, 2, v2")
    e("v_add_u32 v2, v2, v4")
    e("v_mul_u32_u24 v2, 160, v2")
    e("v_and_b32 v3, 3, v1")
    e("v_lshl_add_u32 v2, v3, 3, v2")
    e(f"v_add_u32 v{vWT}, s{sWM}, v2")
    e(f"v_add_u32 v{vWT+1}, 61440, v{vWT}")
    e(f"v_add_u32 v{vWT+2}, 122880, v{vWT}")
    e(f"v_lshlrev_b32 v{vZ}, 24, v1")
    e("v_mov_b32 v9, 0")


wq = [(i, dt) for i in range(14) for dt in range(5)]
wpos = [0]


def adv(sk, so, sb, stride, mod, add=0, bad=False):
    e(f"s_add_u32 s{sk}, s{sk}, 1")
    e(f"s_cmp_eq_u32 s{sk}, {mod}")
    e(f"s_cselect_b32 s{sk}, 0, s{sk}")
    e(f"s_mul_i32 s{so}, s{sk}, {stride}")
    e(f"s_add_u32 s{so}, s{so}, s{sb}")
    if add:
        e(f"s_add_u32 s{so}, s{so}, {add}")
    if bad:
        e(f"s_cmp_eq_u32 s{sk}, s{sBADK}")
        e(f"s_cselect_b32 s{so}, {BIG}, s{so}")


trpos = [0]
ppos = [NN * 5]


def w_dma(n, lim=14):
    for _ in range(n):
        if wpos[0] >= NN * 5:
            return
        i, j = wq[wpos[0]]
        if i >= lim:
            return
        if j == 0:
            adv(sKW, sP2W, sPWB, 163840, NN)
            e(f"s_add_u32 m0, s{sWM}, {i*20480}")
            e("s_nop 0")
        if j == 4:
            e(f"s_add_u32 m0, s{sWM}, {i*20480+4096}")
            e("s_nop 0")
        wpos[0] += 1
        e.vmem(f"buffer_load_dwordx4 v{vWD+j}, {S(SW2)}, s{sP2W} offen offset:{1024*(j&3)} lds", ("W", i))


def w_tr(n):
    for _ in range(n):
        i, r = divmod(trpos[0], 10)
        if i >= NN:
            return
        assert wpos[0] >= (i + 1) * 5
        if r == 0:
            e.vmwait(lambda t: t == ("W", i))
        dt, q = divmod(r, 2)
        off = (i % 3) * 20480 + dt * 32 + q * 1280
        e.lds(f"ds_read_b64_tr_b16 {wreg2(i,dt,q)}, v{vWT+i//3} offset:{off}", ("T", i, dt))
        trpos[0] += 1


def w_loads(n):
    for _ in range(n):
        if ppos[0] >= 70:
            return
        i, dt = wq[ppos[0]]
        ppos[0] += 1
        if dt == 0:
            adv(sKW2, sP2W, sPPB, 163840, NP, bad=True)
        if dt < 4:
            e.vmem(f"buffer_load_dwordx4 {wreg(i,dt)}, v{vWL}, {S(SWS)}, s{sP2W} offen offset:{dt*1024} sc1", ("W", i))
        else:
            e.vmem(f"buffer_load_dwordx4 {wreg(i,dt)}, v{vWL2}, {S(SWS)}, s{sP2W} offen sc1", ("W", i))


def h_loads(i, tsel=None):
    for t in (range(4) if tsel is None else [tsel]):
        so = sHS[i % 6]
        if t == 0:
            if i < NN:
                adv(sKH, so, sPHB, 16384, NN)
            else:
                adv(sKH2, so, sPHB, 16384, NP, add=NN * 16384, bad=True)
        b = HR + (i % NHR) * 16 + t * 4
        e.vmem(f"buffer_load_dwordx4 {V(b)}, v{vHL+t}, {S(SWS)}, s{so} offen sc1", ("H", i, t))


def spin(name, voff, reg, srdb, cmp_nonce=True, slp=None):
    e.vmwait(lambda t: t == ("P", name))
    e(f"s_mov_b32 s{sCNT}, 0")
    e.label(f"L_spin_{name}")
    if cmp_nonce:
        e(f"v_cmp_eq_u64 vcc, s[{sNON}:{sNON+1}], v[{reg}:{reg+1}]")
    else:
        e(f"v_cmp_ne_u64 vcc, 0, v[{reg}:{reg+1}]")
    e(f"s_add_u32 s{sCNT}, s{sCNT}, 1")
    e("s_cmp_eq_u64 vcc, exec")
    e(f"s_cbranch_scc1 L_ok_{name}")
    e(f"s_cmp_ge_u32 s{sCNT}, {SPIN}")
    e(f"s_cbranch_scc1 L_ok_{name}")
    e(f"s_sleep {A.sleep if slp is None else slp}")
    e(f"buffer_load_dwordx2 v[{reg}:{reg+1}], v{voff}, {S(srdb)}, 0 offen sc1")
    e("s_waitcnt vmcnt(0)")
    e(f"s_branch L_spin_{name}")
    e.label(f"L_ok_{name}")


def poll_issue(name, voff, reg, srdb):
    e.vmem(f"buffer_load_dwordx2 v[{reg}:{reg+1}], v{voff}, {S(srdb)}, 0 offen sc1", ("P", name))


def get_nonce(tag, slp=None):
    e.vmwait(lambda t: t == ("P", tag))
    e(f"s_mov_b32 s{sCNT}, 0")
    e.label(f"L_spin_{tag}")
    e(f"v_readfirstlane_b32 s{sNON}, v4")
    e(f"v_readfirstlane_b32 s{sNON+1}, v5")
    e(f"s_add_u32 s{sCNT}, s{sCNT}, 1")
    e(f"s_cmp_lg_u32 s{sNON+1}, 0")
    e(f"s_cbranch_scc1 L_ok_{tag}")
    e(f"s_cmp_ge_u32 s{sCNT}, {SPIN}")
    e(f"s_cbranch_scc1 L_ok_{tag}")
    e(f"s_sleep {A.sleep if slp is None else slp}")
    e(f"buffer_load_dwordx2 v[4:5], v9, {S(SDBG)}, 0 offen sc1")
    e("s_waitcnt vmcnt(0)")
    e(f"s_branch L_spin_{tag}")
    e.label(f"L_ok_{tag}")
    e("s_nop 1")
    set_exp()


p2bar = []


def phase2_main():
    HD = A.hd
    L = A.tl
    I0 = 14 - L
    order = [(i, t) for i in range(I0) for t in range(4)]
    order += [(i, t) for t in (1, 2, 3, 0) for i in range(I0, 14)]
    hq = list(order)
    hso = set()

    cur = [0]
    owe = [0]

    def h_next():
        owe[0] += 1
        while owe[0] and h_one():
            owe[0] -= 1

    def h_one():
        if not hq:
            return False
        i, t = hq[0]
        if i >= NHR and order.index((i - NHR, t)) >= cur[0]:
            return False
        hq.pop(0)
        if i not in hso:
            for j in range(14):
                if j not in hso and j <= (i if i < I0 else 13):
                    hso.add(j)
                    so = sHS[j % 6]
                    if j < NN:
                        adv(sKH, so, sPHB, 16384, NN)
                    else:
                        adv(sKH2, so, sPHB, 16384, NP, add=NN * 16384, bad=True)
        b = HR + (i % NHR) * 16 + t * 4
        e.vmem(f"buffer_load_dwordx4 {V(b)}, v{vHL+t}, {S(SWS)}, s{sHS[i%6]} offen {A.hfl.replace('_',' ')}", ("H", i, t))
        return True

    for _ in range(4 * HD):
        h_next()
    e.ts(True)
    wseen = set()
    pend = []
    R = 0
    nred = [0]
    for gi, (i, t) in enumerate(order):
        cur[0] = gi
        assert (i, t) not in hq
        e.vmwait(lambda g: g == ("H", i, t) or g == ("W", i))
        if i not in wseen:
            wseen.add(i)
            assert i >= NN or trpos[0] >= (i + 1) * 10
            assert ppos[0] >= (i + 1) * 5
            e.lgwait(lambda g: g[0] == "T" and g[1] == i)
        hb = HR + (i % NHR) * 16 + t * 4
        k = gi - 4 * I0
        for dt in range(5):
            d = ACC2 + (t * 5 + dt) * 4
            c = "0" if i == 0 else V(d)
            e(f"v_mfma_f32_16x16x32_bf16 {V(d)}, {wreg(i,dt)}, {V(hb)}, {c}")
            if dt == 1:
                h_next()
            if dt >= 2:
                w_tr(1)
            if dt == 3 and gi % A.wp2s == 0:
                w_loads(1)
            if pend and (dt == 4 or (dt == 2 and k % L > 0)):
                assert p2bar
                pt, pd = pend.pop(0)
                e.lds(f"ds_write_b128 v{vRW+pt-1}, {V(ACC2+(pt*5+pd)*4)} offset:{pd*1024}", ("RW",))
                if not pend and pt == 3:
                    nred[0] = 1
            elif nred[0] == 1 and dt == 4:
                nred[0] = 2
                e("s_waitcnt lgkmcnt(0)")
                e.lg = []
                e("s_barrier")
                for j in range(3):
                    for d2 in range(5):
                        e.lds(f"ds_read_b128 {V(RB[j*5+d2])}, v{vRR} offset:{j*5120+d2*1024}", ("RR", j, d2))
        if k >= 0 and k % L == L - 1 and t != 0:
            pend += [(t, dt) for dt in range(5)]
        if A.ts2 and ((k < 0 and gi % 4 == 3) or (k >= 0 and k % L == L - 1 and t in (2,))):
            e.ts(True)
        if trpos[0] == NN * 10 and not p2bar:
            p2bar.append(1)
            e.lgwait(lambda g: g[0] == "T")
            e("s_barrier")
    assert ppos[0] == 70 and trpos[0] == NN * 10 and p2bar and not pend and nred[0] == 2
    e.ts(True)
    e("s_nop 7")
    for dt in range(5):
        d = ACC2 + dt * 4
        for j in range(3):
            e.lgwait(lambda g: g == ("RR", j, dt))
            for r in range(0, 4, 2):
                s_ = RB[j * 5 + dt] + r
                e(f"v_pk_add_f32 v[{d+r}:{d+r+1}], v[{d+r}:{d+r+1}], v[{s_}:{s_+1}]")
        O = RB[dt]
        e(f"v_cvt_pk_bf16_f32 v{O}, v{d}, v{d+1}")
        e(f"v_cvt_pk_bf16_f32 v{O+1}, v{d+2}, v{d+3}")
        e.vmem(f"buffer_store_dwordx2 v[{O}:{O+1}], v{vOS}, {S(SOUT)}, s{sOO} offen offset:{dt*32} {A.ofl.replace('_',' ')}", ("O",))
    e.ts(True)


RB = [ACC2 + 20 + 4 * k for k in range(15)]


def diag_dump():
    if not A.diag:
        return
    e("s_waitcnt lgkmcnt(0)")
    if A.diag >= 2:
        e(f"s_cmp_lg_u32 s3, 0")
        e("s_cbranch_scc1 L_end")
        e(f"s_cmp_ge_u32 s{sSLOT}, 28")
        e("s_cbranch_scc1 L_end" if A.diag != 4 else "s_cbranch_scc0 L_end")
        e("v_mov_b32 v2, 0")
        for k in range(14):
            e(f"s_sub_u32 s{sT0}, s{64+2*k}, s{sNON}")
            e(f"v_writelane_b32 v2, s{sT0}, {k}")
        e("v_lshlrev_b32 v3, 2, v1")
        e("v_add_u32 v3, 8, v3")
        e("v_cmp_gt_u32 vcc, 14, v1")
        e("v_mov_b32 v4, 0x1000000")
        e("v_cndmask_b32 v3, v4, v3, vcc")
        e(f"buffer_atomic_{'smax' if A.diag == 3 else 'add'} v2, v3, {S(SDBG)}, 0 offen sc1")
        return
    e(f"s_lshl_b32 s{sT0}, s2, 2")
    e(f"s_add_u32 s{sT0}, s{sT0}, s3")
    e(f"s_lshl_b32 s{sT0}, s{sT0}, 8")
    e(f"s_add_u32 s{sT0}, s{sT0}, {DIAG_OFF}")
    for k in range(16):
        e(f"v_mov_b32 v2, s{64+2*k}")
        e(f"v_mov_b32 v3, s{65+2*k}")
        e(f"buffer_store_dwordx2 v[2:3], v{vZ}, {S(SWS)}, s{sT0} offen offset:{8*k}")
        e("s_nop 1")


def dma(it, part):
    st = it % NS
    if A.split:
        if part == 0:
            e(f"s_add_u32 m0, s{sLDSW}, {st*32768}")
            if it > 0:
                e(f"s_add_u32 s{sKB}, s{sKB}, 1")
                e(f"s_cmp_eq_u32 s{sKB}, 10")
                e(f"s_cselect_b32 s{sKB}, 0, s{sKB}")
            e(f"s_mul_i32 s{sXO}, s{sKB}, s{sWB}")
            e(f"s_add_u32 s{sXO}, s{sXO}, s{sXB}")
        if part == 4:
            e(f"s_add_u32 m0, s{sLDSW}, {st*32768+4096}")
            e(f"s_add_u32 s{sXO}, s{sXO}, s{sWO}")
        e.vmem(f"buffer_load_dwordx4 v{vX+(part&3)}, {S(SX)}, s{sXO} offen offset:{1024*(part&3)} lds", ("D", it))
        return
    if part == 0:
        e(f"s_add_u32 m0, s{sLDSW}, {st*32768}")
        if it > 0:
            e(f"s_add_u32 s{sKB}, s{sKB}, 1")
            e(f"s_cmp_eq_u32 s{sKB}, 10")
            e(f"s_cselect_b32 s{sKB}, 0, s{sKB}")
        e(f"s_lshl_b32 s{sXO}, s{sKB}, 7")
        e(f"s_add_u32 s{sXO}, s{sXO}, s{sXB}")
    if part == 4:
        e(f"s_add_u32 m0, s{sLDSW}, {st*32768+16384}")
        e(f"s_mul_i32 s{sWO}, s{sKB}, {64*3456}")
        e(f"s_add_u32 s{sWO}, s{sWO}, s{sWB}")
    if part < 4:
        e.vmem(f"buffer_load_dwordx4 v{vX+part}, {S(SX)}, s{sXO} offen offset:{1024*part} lds", ("D", it))
    else:
        e.vmem(f"buffer_load_dwordx4 v{vW+part-4}, {S(SW1)}, s{sWO} offen offset:{1024*(part-4)} lds", ("D", it))


def frag_reads(n, half):
    it, ks = divmod(n, 4)
    st = it % NS
    j, so = st >> 1, (st & 1) * 32768
    f = FR[n & 1]
    ft = tt = half
    for q in range(2):
        e.lds(f"ds_read_b64_tr_b16 v[{f+ft*4+2*q}:{f+ft*4+2*q+1}], v{vAa+j*2+ft} offset:{so+ks*4096+q*1024}", ("A", n, ft))
    e.lds(f"ds_read_b128 {V(f+8+tt*4)}, v{vB+j*4+ks} offset:{so+tt*4096}", ("B", n, tt))


def mfma1(n, ft, tt):
    f = FR[n & 1]
    a = acc(ft, tt)
    c = "0" if n == 0 else V(a, 16)
    e(f"v_mfma_f32_32x32x16_bf16 {V(a,16)}, {V(f+ft*4)}, {V(f+8+tt*4)}, {c}")


def gemm_role():
    if A.map1 == 47:
        e(f"s_mul_i32 s{sT0}, s{sSLOT}, 37")
        e(f"s_lshr_b32 s{sT0}, s{sT0}, 8")
        e(f"s_mul_i32 s{sT1}, s{sT0}, 7")
        e(f"s_sub_u32 s{sT1}, s{sSLOT}, s{sT1}")
        if A.rot1:
            e(f"s_mul_i32 s{sKB}, s{sT1}, 3")
            e(f"s_mul_i32 s{sT2}, s{sT0}, 5")
            e(f"s_lshr_b32 s{sT2}, s{sT2}, 1")
            e(f"s_add_u32 s{sKB}, s{sKB}, s{sT2}")
            e(f"s_lshr_b32 s{sT2}, s{sXCD}, 1")
            e(f"s_add_u32 s{sKB}, s{sKB}, s{sT2}")
            e(f"s_and_b32 s{sT2}, s{sXCD}, 1")
            e(f"s_add_u32 s{sKB}, s{sKB}, s{sT2}")
        e(f"s_lshr_b32 s{sRB}, s{sXCD}, 1")
        e(f"s_lshl_b32 s{sRB}, s{sRB}, 2")
        e(f"s_add_u32 s{sRB}, s{sRB}, s{sT0}")
        e(f"s_and_b32 s{sNT}, s{sXCD}, 1")
        e(f"s_mul_i32 s{sNT}, s{sNT}, 7")
        e(f"s_add_u32 s{sNT}, s{sNT}, s{sT1}")
    else:
        e(f"s_cmp_ge_u32 s{sSLOT}, 14")
        e(f"s_cselect_b32 s{sT0}, 1, 0")
        e(f"s_cselect_b32 s{sT1}, 14, 0")
        e(f"s_sub_u32 s{sNT}, s{sSLOT}, s{sT1}")
        e(f"s_lshl_b32 s{sRB}, s{sXCD}, 1")
        e(f"s_add_u32 s{sRB}, s{sRB}, s{sT0}")
        if A.rot1:
            e(f"s_mul_i32 s{sKB}, s{sNT}, 3")
            e(f"s_mul_i32 s{sT2}, s{sT0}, 5")
            e(f"s_add_u32 s{sKB}, s{sKB}, s{sT2}")
            e(f"s_add_u32 s{sKB}, s{sKB}, s{sXCD}")
    if A.rot1:
        e(f"s_mul_i32 s{sT2}, s{sKB}, 205")
        e(f"s_lshr_b32 s{sT2}, s{sT2}, 11")
        e(f"s_mul_i32 s{sT2}, s{sT2}, 10")
        e(f"s_sub_u32 s{sKB}, s{sKB}, s{sT2}")
    else:
        e(f"s_mov_b32 s{sKB}, 0")
    if A.split:
        e(f"s_lshl_b32 s{sLDSW}, s3, 13")
        e(f"s_lshl_b32 s{sT0}, s{sRB}, 1")
        e(f"s_add_u32 s{sT0}, s{sT0}, s3")
        e(f"s_mul_i32 s{sXB}, s{sT0}, {64*1280}")
        e(f"s_and_b32 s{sT1}, s3, 1")
        e(f"s_mul_i32 s{sT1}, s{sT1}, {32*3456}")
        e(f"s_lshl_b32 s{sT0}, s{sNT}, 8")
        e(f"s_add_u32 s{sT1}, s{sT1}, s{sT0}")
        e(f"s_cmp_ge_u32 s3, 2")
        e(f"s_cselect_b32 s{sXB}, s{sT1}, s{sXB}")
        e(f"s_mov_b32 s{sWB}, 128")
        e(f"s_mov_b32 s{sWO}, {32*1280}")
        e(f"s_cselect_b32 s{sWB}, {64*3456}, s{sWB}")
        e(f"s_cselect_b32 s{sWO}, {16*3456}, s{sWO}")
    else:
        e(f"s_lshl_b32 s{sLDSW}, s3, 12")
        e(f"s_lshl_b32 s{sT0}, s{sRB}, 2")
        e(f"s_add_u32 s{sT0}, s{sT0}, s3")
        e(f"s_mul_i32 s{sXB}, s{sT0}, {32*1280}")
        e(f"s_mul_i32 s{sWB}, s3, {16*3456}")
        e(f"s_lshl_b32 s{sT0}, s{sNT}, 8")
        e(f"s_add_u32 s{sWB}, s{sWB}, s{sT0}")
    e("v_lshrrev_b32 v2, 3, v1")
    e("v_mul_u32_u24 v2, 1280, v2")
    e("v_and_b32 v3, 7, v1")
    e("v_lshrrev_b32 v4, 4, v1")
    e("v_xor_b32 v5, v3, v4")
    e("v_xor_b32 v6, 4, v5")
    e("v_lshl_add_u32 v5, v5, 4, v2")
    e("v_lshl_add_u32 v6, v6, 4, v2")
    for i in range(4):
        e(f"v_add_u32 v{vX+i}, {i*(10240-1024)}, v{5+(i&1)}")
    e("v_mul_u32_u24 v2, 3456, v4")
    e("v_and_b32 v3, 15, v1")
    e("v_lshlrev_b32 v5, 2, v4")
    e("v_xor_b32 v3, v3, v5")
    e("v_lshl_add_u32 v2, v3, 4, v2")
    for i in range(4):
        e(f"v_add_u32 v{vW+i}, {i*(13824-1024)}, v2")
    if A.split:
        e(f"s_cmp_ge_u32 s3, 2")
        e(f"s_cselect_b64 vcc, -1, 0")
        for i in range(4):
            e(f"v_cndmask_b32 v{vX+i}, v{vX+i}, v{vW+i}, vcc")
        e("s_waitcnt lgkmcnt(0)")
        e(f"s_cselect_b64 s[{SX}:{SX+1}], s[6:7], s[4:5]")
        e(f"s_mov_b32 s{SX+2}, {2048*1280}")
        e(f"s_cselect_b32 s{SX+2}, {640*3456}, s{SX+2}")
        e(f"s_mov_b32 s{SX+3}, 0x00020000")
    else:
        e("s_waitcnt lgkmcnt(0)")
        srd(SX, 4, 2048 * 1280)
        srd(SW1, 6, 640 * 3456)
    allq = [(it, p) for it in range(NIT) for p in range(8)]
    for _ in range(min(A.P, 10)):
        dma(*allq.pop(0))
    srd(SWS, 14, WS_SIZE)
    srd(SOUT, 10, 2048 * 1280)
    srd(SDBG, 12, 256)
    e(f"s_mov_b32 s10, {1728*1280}")
    e(f"s_mov_b32 s11, 0x00020000")
    if A.pf:
        code_prefetch()
    e("v_and_b32 v2, 31, v1")
    e("v_lshrrev_b32 v3, 5, v1")
    e("v_bfe_u32 v4, v1, 1, 3")
    e(f"s_and_b32 s{sT0}, s3, 1")
    e(f"s_lshr_b32 s{sT1}, s3, 1")
    e(f"s_lshl_b32 s{sT2}, s{sT0}, 13")
    e(f"v_lshl_add_u32 v2, v2, 7, s{sT2}")
    for ks in range(4):
        e(f"v_or_b32 v5, {2*ks}, v3")
        e("v_xor_b32 v5, v5, v4")
        e(f"v_lshl_add_u32 v{vB+ks}, v5, 4, v2")
    nj = (NS + 1) // 2
    for j in range(1, nj):
        for ks in range(4):
            e(f"v_add_u32 v{vB+j*4+ks}, {j*65536}, v{vB+ks}")
    e("v_bfe_u32 v2, v1, 2, 2")
    e("v_lshl_add_u32 v5, v3, 3, v2")
    e("v_lshlrev_b32 v5, 8, v5")
    e("v_and_b32 v6, 1, v1")
    e("v_lshl_add_u32 v5, v6, 3, v5")
    e("v_add_u32 v5, 16384, v5")
    e("v_bfe_u32 v6, v1, 4, 1")
    e("v_bfe_u32 v7, v1, 1, 1")
    e("v_lshl_add_u32 v6, v6, 1, v7")
    e(f"s_lshl_b32 s{sT2}, s{sT1}, 3")
    e(f"v_or_b32 v6, s{sT2}, v6")
    e("v_lshlrev_b32 v2, 2, v2")
    for ft in range(2):
        e(f"v_or_b32 v7, {4*ft}, v6")
        e("v_xor_b32 v7, v7, v2")
        e(f"v_lshl_add_u32 v{vAa+ft}, v7, 4, v5")
    for j in range(1, nj):
        for ft in range(2):
            e(f"v_add_u32 v{vAa+j*2+ft}, {j*65536}, v{vAa+ft}")
    e("v_bfe_u32 v5, v1, 4, 1")
    e("v_and_b32 v6, 15, v1")
    e("v_lshl_add_u32 v6, v3, 4, v6")
    e("v_lshlrev_b32 v6, 4, v6")
    e(f"v_lshl_add_u32 v{vHS}, v5, 10, v6")
    e(f"s_lshl_b32 s{sT2}, s{sRB}, 1")
    e(f"s_add_u32 s{sT2}, s{sT2}, s{sT0}")
    e(f"s_lshl_b32 s{sT3}, s{sNT}, 1")
    e(f"s_add_u32 s{sT3}, s{sT3}, s{sT1}")
    e(f"s_mov_b32 s{sREG}, s{sT2}")
    e(f"s_lshl_b32 s{sHF}, s{sT2}, 5")
    e(f"s_add_u32 s{sHF}, s{sHF}, s{sT3}")
    e(f"s_lshl_b32 s{sHF}, s{sHF}, 7")
    e(f"s_add_u32 s{sHF}, s{sHF}, {FLAG_OFF}")
    e(f"s_mul_i32 s{sT2}, s{sT2}, 27")
    e(f"s_add_u32 s{sT2}, s{sT2}, s{sT3}")
    e(f"s_lshl_b32 s{sH0}, s{sT2}, 13")
    e(f"s_cmp_ge_u32 s{sT3}, 27")
    e(f"s_cselect_b32 s{sH0}, {BIG}, s{sH0}")
    e(f"s_cselect_b32 s{sHF}, {BIG}, s{sHF}")
    e(f"s_add_u32 s{sH1}, s{sH0}, 4096")
    p2_setup()
    get_xcc()
    for _ in range(A.P - min(A.P, 10)):
        dma(*allq.pop(0))
    if A.pfn < 0:
        w2_prefetch()
    e.ts()
    e.vmwait(lambda t: t == ("D", 0))
    e("s_barrier")
    e.ts()
    frag_reads(0, 0)
    frag_reads(0, 1)
    freed = [NS - 1]
    wlim = [0]
    WLIM = {5: 1, 6: 3, 7: 4, 8: 6}

    pok = [False]

    def filler(slot=0):
        if allq:
            if allq[0][0] <= freed[0]:
                dma(*allq.pop(0))
        elif slot < A.srate and not A.noside:
            w0 = wpos[0]
            w_dma(1, wlim[0])
            if wpos[0] == w0 and pok[0] and ppos[0] - NN * 5 < A.wil:
                w_loads(1)
    for it in range(NIT):
        for ks in range(4):
            n = it * 4 + ks
            e.lgwait(lambda t: t in (("A", n, 0), ("B", n, 0)))
            mfma1(n, 0, 0)
            if ks == 3 and it < NIT - 1:
                e.lg = []
                e.vmwait(lambda t: t == ("D", it + 1), "lgkmcnt(0)")
                e("s_barrier")
                freed[0] = it + NS
                wlim[0] = WLIM.get(it, 0)
            if n + 1 < 4 * NIT:
                frag_reads(n + 1, 0)
            e.lgwait(lambda t: t == ("A", n, 1))
            mfma1(n, 1, 0)
            if n + 1 < 4 * NIT:
                frag_reads(n + 1, 1)
            e.lgwait(lambda t: t == ("B", n, 1))
            mfma1(n, 0, 1)
            filler()
            if not A.spn and n >= A.pfn and (n - A.pfn) % A.pfs == 0 and (n - A.pfn) // A.pfs < A.pfp:
                w2_prefetch((n - A.pfn) // A.pfs)
            if it == NIT - 1 and not A.noside:
                w_dma(1, wlim[0])
            if n == A.nn0:
                get_nonce("n1")
            if n == A.zf:
                reg_store()
            if n >= A.qn and (n - A.qn) % A.qs == 0 and (n - A.qn) // A.qs < QP:
                w2p_prefetch((n - A.qn) // A.qs)
            if n == A.qh:
                w2p_half_prefetch()
            if n == A.rn0:
                if A.loc:
                    poll_issue("r", vRG, vPD, SWS)
            if n == A.rn1:
                comb_decide()
            if n == A.np:
                poll_issue("n1", 9, 4, SDBG)
            if n == A.fn0:
                poll_issue("w2a", vFW, 6, SWS)
            if n == A.fn1:
                spin("w2a", vFW, 6, SWS)
                pok[0] = True
            mfma1(n, 1, 1)
            filler(1)
        if it % 3 == 0 or A.tsm:
            e.ts()

    assert not allq
    e("s_barrier")


def gemm_epilogue_stores():
    e("s_nop 6")
    vm0 = list(e.vm)
    for var in ((0, 1) if A.loc else (1,)):
        e.vm = list(vm0)
        if A.loc and var == 0:
            e(f"s_cmp_lg_u32 s{sLOC}, 0")
            e("s_cbranch_scc1 L_epi_far")
        if A.loc and var == 1:
            e.label("L_epi_far")
        k = 0
        for (ft, tt) in [(0, 0), (1, 0), (0, 1), (1, 1)]:
            a = acc(ft, tt)
            h = HOUT + k * 8
            k += 1
            for c in range(2):
                for p in range(4 * c, 4 * c + 4):
                    e(f"v_cvt_pk_bf16_f32 v{h+p}, v{a+2*p}, v{a+2*p+1}")
                for p in range(4 * c, 4 * c + 4):
                    e(f"v_pk_max_i16 v{h+p}, v{h+p}, 0")
                e.vmem(f"buffer_store_dwordx4 {V(h+4*c)}, v{vHS}, {S(SWS)}, s{sH0+ft} offen offset:{tt*2048+c*512}{' sc1' if var else ' '+A.sfl.replace('_',' ')}", ("S",))
        if A.loc and var == 0:
            e("s_branch L_epi_done")
    if A.loc:
        e.label("L_epi_done")


def repack_role():
    sWI, sL = sRB, sLDSW
    e(f"s_sub_u32 s{sWI}, s{sSLOT}, 28")
    e(f"s_lshl_b32 s{sWI}, s{sWI}, 3")
    e(f"s_add_u32 s{sWI}, s{sWI}, s{sXCD}")
    e(f"s_lshl_b32 s{sWI}, s{sWI}, 2")
    e(f"s_add_u32 s{sWI}, s{sWI}, s3")
    e(f"s_mul_i32 s{sL}, s3, {NU*4096}")
    e("v_lshrrev_b32 v2, 3, v1")
    e("v_mul_u32_u24 v2, 1280, v2")
    e("v_and_b32 v3, 7, v1")
    e("v_bfe_u32 v4, v1, 4, 2")
    e("v_lshlrev_b32 v4, 1, v4")
    e("v_xor_b32 v3, v3, v4")
    e("v_lshl_add_u32 v2, v3, 4, v2")
    for i in range(4):
        e(f"v_add_u32 v{vX+i}, {i*(10240-1024)}, v2")
    e("s_waitcnt lgkmcnt(0)")
    srd(SDBG, 12, 256)
    e("s_cmp_lg_u32 s{0}, 124".format(sWI))
    e("s_cbranch_scc1 L_nononce")
    e(f"s_memrealtime s[{sNON}:{sNON+1}]")
    e("s_waitcnt lgkmcnt(0)")
    e(f"s_or_b32 s{sNON+1}, s{sNON+1}, 0x40000000")
    e(f"v_mov_b32 v2, s{sNON}")
    e(f"v_mov_b32 v3, s{sNON+1}")
    e("v_lshlrev_b32 v4, 24, v1")
    e(f"buffer_store_dwordx2 v[2:3], v4, {S(SDBG)}, 0 offen sc1")
    e.label("L_nononce")
    get_xcc()
    srd(SOUT, 10, 2048 * 1280)
    e(f"s_mov_b32 s10, {1728*1280}")
    e(f"s_mov_b32 s11, 0x00020000")
    for k in range(NU):
        e(f"s_add_u32 s{sT0}, s{sWI}, {128*k}")
        e(f"s_mul_i32 s{sT1}, s{sT0}, 205")
        e(f"s_lshr_b32 s{sT1}, s{sT1}, 11")
        e(f"s_mul_i32 s{sT2}, s{sT1}, 10")
        e(f"s_sub_u32 s{sT2}, s{sT0}, s{sT2}")
        e(f"s_mul_i32 s{sT1}, s{sT1}, 40960")
        e(f"s_lshl_b32 s{sT2}, s{sT2}, 7")
        e(f"s_add_u32 s{sT1}, s{sT1}, s{sT2}")
        e(f"s_add_u32 s{sT1}, s{sT1}, {NN*163840}")
        e(f"s_cmp_ge_u32 s{sT0}, {NUNIT}")
        e(f"s_cselect_b32 s{sT1}, {BIG}, s{sT1}")
        e(f"s_add_u32 m0, s{sL}, {k*4096}")
        e("s_nop 0")
        for i in range(4):
            e.vmem(f"buffer_load_dwordx4 v{vX+i}, {S(SW2)}, s{sT1} offen offset:{1024*i} lds", ("R", k))
    srd(SWS, 14, WS_SIZE)
    if not A.spn:
        w2_prefetch()
    if A.pf:
        code_prefetch()
    e("v_lshrrev_b32 v2, 5, v1")
    e("v_bfe_u32 v3, v1, 4, 1")
    e("v_bfe_u32 v4, v1, 2, 2")
    e("v_lshlrev_b32 v2, 4, v2")
    e("v_lshl_add_u32 v2, v3, 2, v2")
    e("v_add_u32 v2, v2, v4")
    e("v_lshlrev_b32 v2, 7, v2")
    e("v_and_b32 v5, 1, v1")
    e("v_lshl_add_u32 v2, v5, 3, v2")
    e(f"v_add_u32 v2, s{sL}, v2")
    e("v_lshrrev_b32 v4, 1, v4")
    e("v_lshl_add_u32 v3, v3, 1, v4")
    e("v_lshlrev_b32 v3, 1, v3")
    e("v_bfe_u32 v5, v1, 1, 1")
    for b in range(4):
        e(f"v_xor_b32 v6, {2*b}, v3")
        e("v_or_b32 v6, v6, v5")
        e(f"v_lshl_add_u32 v{vW+b}, v6, 4, v2")
    e(f"s_mov_b32 s{sREG}, 0")
    p2_setup()
    poll_issue("n2", 9, 4, SDBG)
    e.ts()
    R = 24
    for k in range(NU):
        e.vmwait(lambda t: t == ("R", k))
        for b in range(4):
            r = R + (k * 4 + b) * 4
            for q in range(2):
                e.lds(f"ds_read_b64_tr_b16 v[{r+2*q}:{r+2*q+1}], v{vW+b} offset:{k*4096+q*1024}", ("T", k, b))
        e(f"s_add_u32 s{sT0}, s{sWI}, {128*k}")
        e(f"s_lshl_b32 s{sT1}, s{sT0}, 12")
        e(f"s_add_u32 s{sT1}, s{sT1}, {W2P_OFF}")
        e(f"s_cmp_ge_u32 s{sT0}, {NUNIT}")
        e(f"s_cselect_b32 s{sT1}, {BIG}, s{sT1}")
        for b in range(4):
            r = R + (k * 4 + b) * 4
            e.lgwait(lambda t: t == ("T", k, b))
            e.vmem(f"buffer_store_dwordx4 {V(r)}, v{vWL}, {S(SWS)}, s{sT1} offen offset:{b*1024} sc1", ("S", k))
        if k == 0:
            get_nonce("n2")
            if A.sreg:
                reg_store()
    if A.spn:
        spare_nat_prefetch()
    e.ts()
    for k in range(NU):
        e.vmwait(lambda t: t == ("S", k))
        e(f"s_add_u32 s{sT0}, s{sWI}, {128*k}")
        e(f"s_lshl_b32 s{sT1}, s{sT0}, 7")
        e(f"s_add_u32 s{sT1}, s{sT1}, {W2F_OFF}")
        e(f"s_cmp_ge_u32 s{sT0}, {NUNIT}")
        e(f"s_cselect_b32 s{sT1}, {BIG}, s{sT1}")
        e.vmem(f"buffer_store_dwordx2 v[2:3], v{vZ}, {S(SWS)}, s{sT1} offen sc1", ("F", k))
    if not A.sreg:
        reg_store()
    e.ts()
    e("s_barrier")
    if A.spq:
        spare_pack_prefetch()


def kdesc(name):
    return f""".amdhsa_kernel {name}
  .amdhsa_next_free_vgpr 512
  .amdhsa_next_free_sgpr 102
  .amdhsa_accum_offset 256
  .amdhsa_group_segment_fixed_size 0
  .amdhsa_kernarg_size 48
  .amdhsa_user_sgpr_count 2
  .amdhsa_user_sgpr_kernarg_segment_ptr 1
  .amdhsa_system_sgpr_workgroup_id_x 1
.end_amdhsa_kernel"""


LDS = max(NS * 32768, 81920)
hdr = [f"; @launch grid=(256,1,1) block=(256,1,1) lds={LDS}",
       '.amdgcn_target "amdgcn-amd-amdhsa--gfx950"', ".text"]

e.l.append(f".globl {KN}\n.p2align 8\n.type {KN},@function\n{KN}:")
e("s_load_dwordx8 s[4:11], s[0:1], 0")
e(f"s_getpc_b64 s[{sPC}:{sPC+1}]")
e.label("L_pc")
e("s_load_dwordx4 s[12:15], s[0:1], 32")
e(f"s_cmp_ge_u32 s2, 256")
e(f"s_cbranch_scc1 L_end")
e("v_and_b32 v1, 63, v0")
e("v_lshrrev_b32 v2, 6, v0")
e(f"s_and_b32 s{sXCD}, s2, 7")
e("v_readfirstlane_b32 s3, v2")
e(f"s_lshr_b32 s{sSLOT}, s2, 3")
e.ts()
e(f"s_cmp_ge_u32 s{sSLOT}, 28")
e("s_cbranch_scc1 L_repack")
gemm_role()
if not A.efirst:
    w_dma(70)
if A.rn1 >= 40:
    comb_decide()
gemm_epilogue_stores()
w_dma(70)
e.ts()
if A.fn1 >= 40:
    spin("w2a", vFW, 6, SWS)
for b in range(A.wpre):
    w_loads(1)
    w_tr(3)
e.vmwait(lambda t: t == ("S",))
h_flag_store()
e.ts()
w_loads(70 - ppos[0] - A.wlate - A.wp2)
e.ts()
nts_join = e.nts
vm_join = list(e.vm)
lg_join = list(e.lg)
tr_join = trpos[0]
pp_join = ppos[0]
e("s_branch L_join")
e.label("L_repack")
e.vm = []
e.lg = []
e.nts = 1
wpos[0] = 0
trpos[0] = 0
ppos[0] = NN * 5
repack_role()
if not A.sord:
    w_dma(70)
poll_issue("w2b", vFW, 6, SWS)
spin("w2b", vFW, 6, SWS, slp=A.ssleep)
e.ts()
w_loads(pp_join - NN * 5)
if A.sord:
    w_dma(70)
w_tr(tr_join)
assert trpos[0] == tr_join and ppos[0] == pp_join
e("s_waitcnt vmcnt(0) lgkmcnt(0)")
while e.nts < nts_join and not A.tsm and not A.ts2:
    e.ts()
e.vm = vm_join
e.lg = lg_join
if A.tsm:
    e.nts = 13
e.label("L_join")
poll_issue("h", vFL, 6, SWS)
w_loads(A.wlate)
w_tr(10 * A.wjoin - trpos[0])
spin("h", vFL, 6, SWS)
e.ts()
phase2_main()
diag_dump()
e.label("L_end")
e.label("L_codeend")
e("s_endpgm")

body = "\n".join(e.l)
ninst = sum(1 for x in e.l if x.startswith("    "))
npf = (ninst * 8 + 8191) // 8192
pf = "\n".join(f"    s_min_u32 s{sT0}, s{sJ}, L_codeend-L_pc\n    s_load_dword s63, s[{sPC}:{sPC+1}], s{sT0}\n    s_add_u32 s{sJ}, s{sJ}, 8192" for k in range(npf))
body = body.replace("@@PF@@", pf)
print("\n".join(hdr) + "\n" + body + "\n" + '.section .rodata,"a"\n.p2align 6\n' + kdesc(KN) + "\n")
```

```python
import sys, argparse
ap = argparse.ArgumentParser()
ap.add_argument("--diag", type=int, default=0)
ap.add_argument("--ns", type=int, default=5)
ap.add_argument("--pf", type=int, default=1)
ap.add_argument("--P", type=int, default=20)
ap.add_argument("--rot1", type=int, default=1)
ap.add_argument("--rot2", type=int, default=1)
ap.add_argument("--map1", type=int, default=214)
ap.add_argument("--nn0", type=int, default=24)
ap.add_argument("--nn", type=int, default=6)
ap.add_argument("--wpre", type=int, default=20)
ap.add_argument("--wlate", type=int, default=0)
ap.add_argument("--fn0", type=int, default=36)
ap.add_argument("--trl", type=int, default=0)
ap.add_argument("--wjoin", type=int, default=12)
ap.add_argument("--ssleep", type=int, default=8)
ap.add_argument("--spf", type=int, default=0)
ap.add_argument("--w2pf", type=int, default=1)
ap.add_argument("--pfn", type=int, default=12)
ap.add_argument("--fn1", type=int, default=99)
ap.add_argument("--srate", type=int, default=2)
ap.add_argument("--pfs", type=int, default=1)
ap.add_argument("--pfp", type=int, default=8)
ap.add_argument("--loc", type=int, default=1)
ap.add_argument("--tsm", type=int, default=0)
ap.add_argument("--zn", type=int, default=10)
ap.add_argument("--zs", type=int, default=1)
ap.add_argument("--zf", type=int, default=26)
ap.add_argument("--rn0", type=int, default=35)
ap.add_argument("--rn1", type=int, default=39)
ap.add_argument("--wfirst", type=int, default=10)
ap.add_argument("--w2late", type=int, default=0)
ap.add_argument("--zplain", type=int, default=0)
ap.add_argument("--qn", type=int, default=99)
ap.add_argument("--qs", type=int, default=2)
ap.add_argument("--split", type=int, default=0)
ap.add_argument("--noside", type=int, default=0)
ap.add_argument("--tl", type=int, default=5)
ap.add_argument("--qp", type=int, default=2)
ap.add_argument("--sord", type=int, default=1)
ap.add_argument("--np", type=int, default=2)
ap.add_argument("--hd", type=int, default=3)
ap.add_argument("--sleep", type=int, default=4)
ap.add_argument("--clk", type=str, default="7,11")
ap.add_argument("--spq", type=int, default=0)
ap.add_argument("--spn", type=int, default=0)
ap.add_argument("--efirst", type=int, default=1)
ap.add_argument("--sreg", type=int, default=1)
ap.add_argument("--wp2", type=int, default=0)
ap.add_argument("--wp2s", type=int, default=1)
ap.add_argument("--qh", type=int, default=99)
ap.add_argument("--qsleep", type=int, default=4)
ap.add_argument("--ts2", type=int, default=0)
ap.add_argument("--hfl", type=str, default="sc1")
ap.add_argument("--sfl", type=str, default="")
ap.add_argument("--ofl", type=str, default="")
ap.add_argument("--pk", type=int, default=0)
ap.add_argument("--wil", type=int, default=99)
ap.add_argument("--pfl", type=int, default=8)
A = ap.parse_args()
A.pfp = (A.nn * 10 + A.pfl - 1) // A.pfl
CLK = [int(x) for x in A.clk.split(",")]

KN = "standalone__dense_activation_relu__prompt_kernel"
HP_OFF = 0
W2P_OFF = 0x700000
FLAG_OFF = 0xA00000
W2F_OFF = FLAG_OFF + 0x40000
REG_OFF = FLAG_OFF + 0x60000
DIAG_OFF = 0xB00000
WS_SIZE = 0xC00000
BIG = 0x40000000
NS = A.ns
NIT = 10
NN = A.nn
NP = 14 - NN
NU = (NP * 40 - 20 + 127) // 128
NUNIT = NP * 40 - 20
assert NS == 5 and A.hd < 6
SPIN = 20000


class Em:
    def __init__(s):
        s.l = []
        s.vm = []
        s.lg = []
        s.nts = 0

    def __call__(s, x):
        for y in x.split("\n"):
            s.l.append("    " + y)

    def label(s, x):
        s.l.append(x + ":")

    def vmem(s, x, tag):
        s(x)
        s.vm.append(tag)

    def vmwait(s, pred, also=""):
        idx = -1
        for i, t in enumerate(s.vm):
            if pred(t):
                idx = i
        if idx < 0:
            if also:
                s("s_waitcnt " + also)
            return
        n = min(len(s.vm) - 1 - idx, 63)
        s(f"s_waitcnt vmcnt({n}) {also}".rstrip())
        s.vm = s.vm[len(s.vm) - n:] if n else []

    def lds(s, x, tag):
        s(x)
        s.lg.append(tag)

    def lgwait(s, pred):
        idx = -1
        for i, t in enumerate(s.lg):
            if pred(t):
                idx = i
        if idx < 0:
            return
        n = min(len(s.lg) - 1 - idx, 15)
        s(f"s_waitcnt lgkmcnt({n})")
        s.lg = s.lg[len(s.lg) - n:] if n else []

    def clk(s, k):
        if A.diag:
            s(f"s_memtime s[{92+2*k}:{93+2*k}]")

    def ts(s, force=False):
        if A.ts2 and not force and s.nts > 0:
            return
        if A.diag:
            k = s.nts
            if A.tsm and k >= 13:
                k = 13
                s.nts = 12
            assert k < 14
            s(f"s_memrealtime s[{64+2*k}:{65+2*k}]")
            if k in CLK:
                s.clk(CLK.index(k))
            s.nts += 1


e = Em()

SX, SW1, SWS, SOUT, SDBG = 16, 20, 24, 28, 32
SW2 = 8
sKW, sKH, sPWB, sPHB = 36, 37, 38, 39
sXCD, sSLOT, sRB, sNT, sT0, sT1, sT2, sT3 = 40, 41, 42, 43, 44, 45, 46, 47
sLDSW, sXO, sWO, sH0, sH1 = 48, 49, 50, 51, 52
sT64, sD80, sP2W, sP2H, sCNT = 53, 54, 55, 56, 57
sNON = 58
sPC = 60
sJ = 62
sKB, sXB, sWB, sBADK, sHF, sOO = 96, 97, 98, 99, 100, 101


def srd(b, ptr, size):
    e(f"s_mov_b32 s{b}, s{ptr}")
    e(f"s_mov_b32 s{b+1}, s{ptr+1}")
    e(f"s_mov_b32 s{b+2}, {size}")
    e(f"s_mov_b32 s{b+3}, 0x00020000")


def S(b):
    return f"s[{b}:{b+3}]"


def V(b, n=4):
    return f"v[{b}:{b+n-1}]"


vX, vW = 208, 212
vB, vAa = 216, 228
FR = [24, 40]
ACC = 56
HOUT = 176
vHS = 8
ACC2 = 176
WX = 136
HR = 24
NHR = 6
vWL, vWL2 = 10, 11
vHL = 12
vRW = 16
vRR = 19
vOS = 20
vFL = 21
vFW = 22
vWD = 120
vWT = 125
sWM = 4
sPPB = 5
sKW2, sKH2 = 6, 7
sXCC, sLOC, sPFB = 12, 13, 14
vZ = 23
vEXP = 130
vPD = 132
vRG = 134
vPZ = 136
sHS = [48, 49, 50, 96, 97, 98]
sPO = 15
sREG = 0


def acc(ft, tt):
    return ACC + (tt * 2 + ft) * 16


def wreg(i, dt):
    if i < 12:
        b = (i * 5 + dt) * 4
        return f"a[{b}:{b+3}]"
    b = WX + ((i - 12) * 5 + dt) * 4
    return f"v[{b}:{b+3}]"


def wreg2(i, dt, q):
    if i < 12:
        b = (i * 5 + dt) * 4 + 2 * q
        return f"a[{b}:{b+1}]"
    b = WX + ((i - 12) * 5 + dt) * 4 + 2 * q
    return f"v[{b}:{b+1}]"


def w2_prefetch(k=None):
    if not A.w2pf:
        return
    per = A.pfl
    for kk in (range(A.pfp) if k is None else [k]):
        if kk == 0:
            e(f"s_lshl_b32 s{sPFB}, s{sSLOT}, 2")
            e(f"s_add_u32 s{sPFB}, s{sPFB}, s3")
            e(f"s_mul_i32 s{sPFB}, s{sPFB}, {NN*1280}")
            e(f"v_lshrrev_b32 v128, {(64//per).bit_length()-1}, v1")
            e(f"v_lshlrev_b32 v128, 7, v128")
        else:
            e(f"s_add_u32 s{sPFB}, s{sPFB}, {per*128}")
        e.vmem(f"buffer_load_dword v129, v128, {S(SW2)}, s{sPFB} offen", ("PF",))


def spare_nat_prefetch():
    per = NN * 80
    e(f"s_sub_u32 s{sPFB}, s{sSLOT}, 28")
    e(f"s_lshl_b32 s{sPFB}, s{sPFB}, 2")
    e(f"s_add_u32 s{sPFB}, s{sPFB}, s3")
    e(f"s_mul_i32 s{sPFB}, s{sPFB}, {per*128}")
    e(f"v_lshlrev_b32 v128, 7, v1")
    k = 0
    while k < per:
        if per - k < 64:
            e(f"v_min_u32 v128, {(per-k-1)*128}, v128")
        e.vmem(f"buffer_load_dword v129, v128, {S(SW2)}, s{sPFB} offen", ("PF",))
        k += 64
        if k < per:
            e(f"s_add_u32 s{sPFB}, s{sPFB}, {64*128}")


def spare_pack_prefetch():
    C = (NUNIT + 15) // 16
    e(f"s_lshl_b32 s{sPFB}, s3, 2")
    e(f"s_add_u32 s{sPFB}, s{sPFB}, s{sSLOT}")
    e(f"s_sub_u32 s{sPFB}, s{sPFB}, 28")
    e(f"s_mul_i32 s{sPFB}, s{sPFB}, {C}")
    e(f"v_min_u32 v128, {C-1}, v1")
    e(f"v_add_u32 v128, s{sPFB}, v128")
    e(f"v_min_u32 v128, {NUNIT-1}, v128")
    e(f"v_lshlrev_b32 v128, 7, v128")
    e(f"v_add_u32 v128, {W2F_OFF}, v128")
    poll_issue("w2q", 128, 6, SWS)
    spin("w2q", 128, 6, SWS, slp=A.qsleep)
    e(f"s_lshl_b32 s{sPFB}, s{sPFB}, 5")
    e(f"v_add_u32 v128, s{sPFB}, v1")
    n = C * 32
    k = 0
    while k < n:
        e(f"v_min_u32 v135, {NUNIT*32-1}, v128")
        e(f"v_lshlrev_b32 v135, 7, v135")
        e(f"s_mov_b32 s{sT0}, {W2P_OFF}")
        e.vmem(f"buffer_load_dword v129, v135, {S(SWS)}, s{sT0} offen sc1", ("PF",))
        k += 64
        if k < n:
            if n - k < 64:
                e(f"v_min_u32 v135, {n-k-1}, v1")
                e(f"v_add3_u32 v128, s{sPFB}, v135, {k}" if k <= 64 else f"v_add_u32 v128, {k}, v135\nv_add_u32 v128, s{sPFB}, v128")
            else:
                e(f"v_add_u32 v128, 64, v128")


def get_xcc():
    e(f"s_getreg_b32 s{sXCC}, hwreg(HW_REG_XCC_ID)")
    e(f"s_and_b32 s{sXCC}, s{sXCC}, 15")


LPW = (NUNIT * 32 + 111) // 112
QP = A.qp
QL = (LPW + QP - 1) // QP
assert QL <= 64 or A.qn >= 40


def w2p_prefetch(k):
    if k == 0:
        e(f"s_lshl_b32 s{sJ}, s{sSLOT}, 2")
        e(f"s_add_u32 s{sJ}, s{sJ}, s3")
        e(f"s_mul_i32 s{sJ}, s{sJ}, {QL*QP*128}")
        e(f"s_add_u32 s{sJ}, s{sJ}, {W2P_OFF}")
        e(f"v_min_u32 v135, {QL-1}, v1")
        e(f"v_lshlrev_b32 v135, 7, v135")
    else:
        e(f"s_add_u32 s{sJ}, s{sJ}, {QL*128}")
    e.vmem(f"buffer_load_dword v129, v135, {S(SWS)}, s{sJ} offen sc1", ("PF",))


def w2p_half_prefetch():
    rows = NUNIT // 10
    tot = rows * 160
    per = (tot + 111) // 112
    assert per <= 64
    e(f"s_lshl_b32 s{sJ}, s{sSLOT}, 2")
    e(f"s_add_u32 s{sJ}, s{sJ}, s3")
    e(f"s_mul_i32 s{sJ}, s{sJ}, {per}")
    e(f"v_min_u32 v135, {per-1}, v1")
    e(f"v_add_u32 v135, s{sJ}, v135")
    e(f"v_min_u32 v135, {tot-1}, v135")
    e(f"v_lshrrev_b32 v128, 5, v135")
    e(f"v_mul_u32_u24 v128, 205, v128")
    e(f"v_lshrrev_b32 v128, 10, v128")
    e(f"v_mul_u32_u24 v128, {40960-160*128}, v128")
    e(f"v_lshl_add_u32 v135, v135, 7, v128")
    e(f"s_mov_b32 s{sJ}, {W2P_OFF}")
    e.vmem(f"buffer_load_dword v129, v135, {S(SWS)}, s{sJ} offen sc1", ("PF",))


def set_exp():
    e(f"s_xor_b32 s{sT0}, s{sNON}, s{sXCC}")
    e(f"v_mov_b32 v4, s{sT0}")
    e(f"v_mov_b32 v5, s{sNON+1}")
    e(f"v_mov_b32 v2, s{sNON}")
    e(f"v_mov_b32 v3, s{sNON+1}")


def reg_store():
    if A.loc:
        e.vmem(f"buffer_store_dwordx2 v[4:5], v{vZ}, {S(SWS)}, s{sREG} offen sc1", ("G",))


def comb_decide():
    if not A.loc:
        return
    e.vmwait(lambda t: t == ("P", "r"))
    e(f"v_cmp_ne_u64 vcc, v[4:5], v[{vPD}:{vPD+1}]")
    e(f"s_or_b32 s{sLOC}, vcc_lo, vcc_hi")


def h_flag_store():
    if A.loc:
        e(f"s_cmp_lg_u32 s{sLOC}, 0")
        e("s_cbranch_scc1 L_fl_far")
        e(f"buffer_store_dwordx2 v[2:3], v{vZ}, {S(SWS)}, s{sHF} offen")
        e("s_branch L_fl_done")
        e.label("L_fl_far")
    e.vmem(f"buffer_store_dwordx2 v[2:3], v{vZ}, {S(SWS)}, s{sHF} offen sc1", ("F",))
    if A.loc:
        e.label("L_fl_done")


def code_prefetch():
    e(f"s_lshl_b32 s{sJ}, s{sSLOT}, 2")
    e(f"s_add_u32 s{sJ}, s{sJ}, s3")
    e(f"s_lshl_b32 s{sJ}, s{sJ}, 6")
    e.l.append("@@PF@@")


def p2_setup():
    e(f"s_lshl_b32 s{sT64}, s{sXCD}, 2")
    e(f"s_lshr_b32 s{sT0}, s{sSLOT}, 3")
    e(f"s_add_u32 s{sT64}, s{sT64}, s{sT0}")
    e(f"s_and_b32 s{sD80}, s{sSLOT}, 7")
    e(f"s_mul_i32 s{sPWB}, s3, 40960")
    e(f"s_mul_i32 s{sT0}, s{sD80}, 160")
    e(f"s_add_u32 s{sPWB}, s{sPWB}, s{sT0}")
    e(f"s_mul_i32 s{sWM}, s3, 5120")
    e(f"s_mul_i32 s{sPPB}, s3, 40960")
    e(f"s_mul_i32 s{sT0}, s{sD80}, 5120")
    e(f"s_add_u32 s{sPPB}, s{sPPB}, s{sT0}")
    e(f"s_add_u32 s{sPPB}, s{sPPB}, {W2P_OFF}")
    e(f"s_mul_i32 s{sPHB}, s{sT64}, 54")
    e(f"s_add_u32 s{sPHB}, s{sPHB}, s3")
    e(f"s_lshl_b32 s{sPHB}, s{sPHB}, 12")
    e(f"s_cmp_ge_u32 s3, 2")
    e(f"s_cselect_b32 s{sBADK}, {NP-1}, 99")
    if A.rot2:
        e(f"s_and_b32 s{sT0}, s{sT64}, 3")
        e(f"s_lshl_b32 s{sT1}, s{sT0}, 1")
        e(f"s_add_u32 s{sKW}, s{sT1}, s{sD80}")
        for _ in range(13 // NN):
            e(f"s_cmp_ge_u32 s{sKW}, {NN}")
            e(f"s_cselect_b32 s{sT1}, {NN}, 0")
            e(f"s_sub_u32 s{sKW}, s{sKW}, s{sT1}")
        if A.rot2 == 2:
            e(f"s_mul_i32 s{sT0}, s{sT0}, {NP}")
            e(f"s_add_u32 s{sT0}, s{sT0}, 2")
            e(f"s_lshr_b32 s{sT0}, s{sT0}, 2")
        else:
            e(f"s_lshl_b32 s{sT0}, s{sT0}, 1")
        e(f"s_add_u32 s{sKW2}, s{sT0}, s{sD80}")
        for _ in range(18 // NP):
            e(f"s_cmp_ge_u32 s{sKW2}, {NP}")
            e(f"s_cselect_b32 s{sT1}, {NP}, 0")
            e(f"s_sub_u32 s{sKW2}, s{sKW2}, s{sT1}")
    else:
        e(f"s_mov_b32 s{sKW}, {NN-1}")
        e(f"s_mov_b32 s{sKW2}, {NP-1}")
    e(f"s_mov_b32 s{sKH}, s{sKW}")
    e(f"s_mov_b32 s{sKH2}, s{sKW2}")
    e(f"v_lshlrev_b32 v{vWL}, 4, v1")
    e(f"v_add_u32 v{vWL2}, 4096, v{vWL}")
    for t in range(4):
        e(f"s_add_u32 s{sT0}, s3, {t}")
        e(f"s_and_b32 s{sT0}, s{sT0}, 3")
        e(f"s_lshl_b32 s{sT1}, s{sT0}, 10")
        e(f"v_add_u32 v{vHL+t}, s{sT1}, v{vWL}")
        if t > 0:
            e(f"s_mul_i32 s{sT1}, s{sT0}, 15360")
            e(f"s_add_u32 s{sT1}, s{sT1}, {(t-1)*5120}")
            e(f"v_add_u32 v{vRW+t-1}, s{sT1}, v{vWL}")
    e(f"s_mul_i32 s{sT1}, s3, 15360")
    e(f"v_add_u32 v{vRR}, s{sT1}, v{vWL}")
    e("v_and_b32 v2, 15, v1")
    e("v_mul_u32_u24 v2, 1280, v2")
    e("v_lshrrev_b32 v3, 4, v1")
    e(f"v_lshl_add_u32 v{vOS}, v3, 3, v2")
    e(f"s_lshl_b32 s{sT0}, s{sT64}, 2")
    e(f"s_add_u32 s{sT0}, s{sT0}, s3")
    e(f"s_mul_i32 s{sOO}, s{sT0}, {16*1280}")
    e(f"s_mul_i32 s{sT1}, s{sD80}, 160")
    e(f"s_add_u32 s{sOO}, s{sOO}, s{sT1}")
    e(f"v_min_u32 v2, 13, v1")
    e(f"s_lshr_b32 s{sT1}, s3, 1")
    e(f"v_lshl_add_u32 v2, v2, 1, s{sT1}")
    e(f"v_min_u32 v2, 26, v2")
    e(f"s_lshl_b32 s{sT0}, s{sT64}, 12")
    e(f"s_add_u32 s{sT0}, s{sT0}, {FLAG_OFF}")
    e(f"v_lshl_add_u32 v{vFL}, v2, 7, s{sT0}")
    e(f"v_min_u32 v2, 7, v1")
    e(f"s_lshl_b32 s{sT0}, s{sREG}, 10")
    e(f"s_add_u32 s{sT0}, s{sT0}, {REG_OFF}")
    e(f"v_lshl_add_u32 v{vRG}, v2, 7, s{sT0}")
    e(f"s_lshl_b32 s{sREG}, s{sT64}, 3")
    e(f"s_add_u32 s{sREG}, s{sREG}, s{sD80}")
    e(f"s_lshl_b32 s{sREG}, s{sREG}, 7")
    e(f"s_add_u32 s{sREG}, s{sREG}, {REG_OFF}")
    e(f"s_cmp_eq_u32 s3, 0")
    e(f"s_cselect_b32 s{sREG}, s{sREG}, {BIG}")
    e(f"v_min_u32 v2, {2*NP-1}, v1")
    e(f"v_lshrrev_b32 v3, 1, v2")
    e(f"v_lshl_add_u32 v3, v3, 2, s3")
    e(f"v_min_u32 v3, {4*NP-3}, v3")
    e(f"v_mul_u32_u24 v3, 10, v3")
    e(f"v_and_b32 v2, 1, v2")
    e(f"s_mul_i32 s{sT0}, s{sD80}, 5")
    e(f"s_lshr_b32 s{sT0}, s{sT0}, 2")
    e(f"v_add3_u32 v2, v2, v3, s{sT0}")
    e(f"v_lshlrev_b32 v2, 7, v2")
    e(f"v_add_u32 v{vFW}, {W2F_OFF}, v2")
    for j in range(5):
        e(f"v_add_u32 v2, {64*j}, v1")
        e(f"v_mul_u32_u24 v3, 205, v2")
        e(f"v_lshrrev_b32 v3, 11, v3")
        e(f"v_mul_u32_u24 v4, {1280-160}, v3")
        e(f"v_lshl_add_u32 v4, v2, 4, v4")
        if j in (1, 2, 3):
            e(f"v_subrev_u32 v{vWD+j}, {1024*j}, v4")
        elif j == 4:
            e(f"v_mov_b32 v{vWD+4}, v4")
        else:
            e(f"v_mov_b32 v{vWD}, v4")
    e("v_lshrrev_b32 v2, 5, v1")
    e("v_bfe_u32 v3, v1, 4, 1")
    e("v_bfe_u32 v4, v1, 2, 2")
    e("v_lshlrev_b32 v2, 4, v2")
    e("v_lshl_add_u32 v2, v3, 2, v2")
    e("v_add_u32 v2, v2, v4")
    e("v_mul_u32_u24 v2, 160, v2")
    e("v_and_b32 v3, 3, v1")
    e("v_lshl_add_u32 v2, v3, 3, v2")
    e(f"v_add_u32 v{vWT}, s{sWM}, v2")
    e(f"v_add_u32 v{vWT+1}, 61440, v{vWT}")
    e(f"v_add_u32 v{vWT+2}, 122880, v{vWT}")
    e(f"v_lshlrev_b32 v{vZ}, 24, v1")
    e("v_mov_b32 v9, 0")


wq = [(i, dt) for i in range(14) for dt in range(5)]
wpos = [0]


def adv(sk, so, sb, stride, mod, add=0, bad=False):
    e(f"s_add_u32 s{sk}, s{sk}, 1")
    e(f"s_cmp_eq_u32 s{sk}, {mod}")
    e(f"s_cselect_b32 s{sk}, 0, s{sk}")
    e(f"s_mul_i32 s{so}, s{sk}, {stride}")
    e(f"s_add_u32 s{so}, s{so}, s{sb}")
    if add:
        e(f"s_add_u32 s{so}, s{so}, {add}")
    if bad:
        e(f"s_cmp_eq_u32 s{sk}, s{sBADK}")
        e(f"s_cselect_b32 s{so}, {BIG}, s{so}")


trpos = [0]
ppos = [NN * 5]


def w_dma(n, lim=14):
    for _ in range(n):
        if wpos[0] >= NN * 5:
            return
        i, j = wq[wpos[0]]
        if i >= lim:
            return
        if j == 0:
            adv(sKW, sP2W, sPWB, 163840, NN)
            e(f"s_add_u32 m0, s{sWM}, {i*20480}")
            e("s_nop 0")
        if j == 4:
            e(f"s_add_u32 m0, s{sWM}, {i*20480+4096}")
            e("s_nop 0")
        wpos[0] += 1
        e.vmem(f"buffer_load_dwordx4 v{vWD+j}, {S(SW2)}, s{sP2W} offen offset:{1024*(j&3)} lds", ("W", i))


def w_tr(n):
    for _ in range(n):
        i, r = divmod(trpos[0], 10)
        if i >= NN:
            return
        assert wpos[0] >= (i + 1) * 5
        if r == 0:
            e.vmwait(lambda t: t == ("W", i))
        dt, q = divmod(r, 2)
        off = (i % 3) * 20480 + dt * 32 + q * 1280
        e.lds(f"ds_read_b64_tr_b16 {wreg2(i,dt,q)}, v{vWT+i//3} offset:{off}", ("T", i, dt))
        trpos[0] += 1


def w_loads(n):
    for _ in range(n):
        if ppos[0] >= 70:
            return
        i, dt = wq[ppos[0]]
        ppos[0] += 1
        if dt == 0:
            adv(sKW2, sP2W, sPPB, 163840, NP, bad=True)
        if dt < 4:
            e.vmem(f"buffer_load_dwordx4 {wreg(i,dt)}, v{vWL}, {S(SWS)}, s{sP2W} offen offset:{dt*1024} sc1", ("W", i))
        else:
            e.vmem(f"buffer_load_dwordx4 {wreg(i,dt)}, v{vWL2}, {S(SWS)}, s{sP2W} offen sc1", ("W", i))


def h_loads(i, tsel=None):
    for t in (range(4) if tsel is None else [tsel]):
        so = sHS[i % 6]
        if t == 0:
            if i < NN:
                adv(sKH, so, sPHB, 16384, NN)
            else:
                adv(sKH2, so, sPHB, 16384, NP, add=NN * 16384, bad=True)
        b = HR + (i % NHR) * 16 + t * 4
        e.vmem(f"buffer_load_dwordx4 {V(b)}, v{vHL+t}, {S(SWS)}, s{so} offen sc1", ("H", i, t))


def spin(name, voff, reg, srdb, cmp_nonce=True, slp=None):
    e.vmwait(lambda t: t == ("P", name))
    e(f"s_mov_b32 s{sCNT}, 0")
    e.label(f"L_spin_{name}")
    if cmp_nonce:
        e(f"v_cmp_eq_u64 vcc, s[{sNON}:{sNON+1}], v[{reg}:{reg+1}]")
    else:
        e(f"v_cmp_ne_u64 vcc, 0, v[{reg}:{reg+1}]")
    e(f"s_add_u32 s{sCNT}, s{sCNT}, 1")
    e("s_cmp_eq_u64 vcc, exec")
    e(f"s_cbranch_scc1 L_ok_{name}")
    e(f"s_cmp_ge_u32 s{sCNT}, {SPIN}")
    e(f"s_cbranch_scc1 L_ok_{name}")
    e(f"s_sleep {A.sleep if slp is None else slp}")
    e(f"buffer_load_dwordx2 v[{reg}:{reg+1}], v{voff}, {S(srdb)}, 0 offen sc1")
    e("s_waitcnt vmcnt(0)")
    e(f"s_branch L_spin_{name}")
    e.label(f"L_ok_{name}")


def poll_issue(name, voff, reg, srdb):
    e.vmem(f"buffer_load_dwordx2 v[{reg}:{reg+1}], v{voff}, {S(srdb)}, 0 offen sc1", ("P", name))


def get_nonce(tag, slp=None):
    e.vmwait(lambda t: t == ("P", tag))
    e(f"s_mov_b32 s{sCNT}, 0")
    e.label(f"L_spin_{tag}")
    e(f"v_readfirstlane_b32 s{sNON}, v4")
    e(f"v_readfirstlane_b32 s{sNON+1}, v5")
    e(f"s_add_u32 s{sCNT}, s{sCNT}, 1")
    e(f"s_cmp_lg_u32 s{sNON+1}, 0")
    e(f"s_cbranch_scc1 L_ok_{tag}")
    e(f"s_cmp_ge_u32 s{sCNT}, {SPIN}")
    e(f"s_cbranch_scc1 L_ok_{tag}")
    e(f"s_sleep {A.sleep if slp is None else slp}")
    e(f"buffer_load_dwordx2 v[4:5], v9, {S(SDBG)}, 0 offen sc1")
    e("s_waitcnt vmcnt(0)")
    e(f"s_branch L_spin_{tag}")
    e.label(f"L_ok_{tag}")
    e("s_nop 1")
    set_exp()


p2bar = []


def phase2_main():
    HD = A.hd
    L = A.tl
    I0 = 14 - L
    order = [(i, t) for i in range(I0) for t in range(4)]
    order += [(i, t) for t in (1, 2, 3, 0) for i in range(I0, 14)]
    hq = list(order)
    hso = set()

    cur = [0]
    owe = [0]

    def h_next():
        owe[0] += 1
        while owe[0] and h_one():
            owe[0] -= 1

    def h_one():
        if not hq:
            return False
        i, t = hq[0]
        if i >= NHR and order.index((i - NHR, t)) >= cur[0]:
            return False
        hq.pop(0)
        if i not in hso:
            for j in range(14):
                if j not in hso and j <= (i if i < I0 else 13):
                    hso.add(j)
                    so = sHS[j % 6]
                    if j < NN:
                        adv(sKH, so, sPHB, 16384, NN)
                    else:
                        adv(sKH2, so, sPHB, 16384, NP, add=NN * 16384, bad=True)
        b = HR + (i % NHR) * 16 + t * 4
        e.vmem(f"buffer_load_dwordx4 {V(b)}, v{vHL+t}, {S(SWS)}, s{sHS[i%6]} offen {A.hfl.replace('_',' ')}", ("H", i, t))
        return True

    for _ in range(4 * HD):
        h_next()
    e.ts(True)
    wseen = set()
    pend = []
    R = 0
    nred = [0]
    for gi, (i, t) in enumerate(order):
        cur[0] = gi
        assert (i, t) not in hq
        e.vmwait(lambda g: g == ("H", i, t) or g == ("W", i))
        if i not in wseen:
            wseen.add(i)
            assert i >= NN or trpos[0] >= (i + 1) * 10
            assert ppos[0] >= (i + 1) * 5
            e.lgwait(lambda g: g[0] == "T" and g[1] == i)
        hb = HR + (i % NHR) * 16 + t * 4
        k = gi - 4 * I0
        for dt in range(5):
            d = ACC2 + (t * 5 + dt) * 4
            c = "0" if i == 0 else V(d)
            e(f"v_mfma_f32_16x16x32_bf16 {V(d)}, {wreg(i,dt)}, {V(hb)}, {c}")
            if dt == 1:
                h_next()
            if dt >= 2:
                w_tr(1)
            if dt == 3 and gi % A.wp2s == 0:
                w_loads(1)
            if pend and (dt == 4 or (dt == 2 and k % L > 0)):
                assert p2bar
                pt, pd = pend.pop(0)
                e.lds(f"ds_write_b128 v{vRW+pt-1}, {V(ACC2+(pt*5+pd)*4)} offset:{pd*1024}", ("RW",))
                if not pend and pt == 3:
                    nred[0] = 1
            elif nred[0] == 1 and dt == 4:
                nred[0] = 2
                e("s_waitcnt lgkmcnt(0)")
                e.lg = []
                e("s_barrier")
                for j in range(3):
                    for d2 in range(5):
                        e.lds(f"ds_read_b128 {V(RB[j*5+d2])}, v{vRR} offset:{j*5120+d2*1024}", ("RR", j, d2))
        if k >= 0 and k % L == L - 1 and t != 0:
            pend += [(t, dt) for dt in range(5)]
        if A.ts2 and ((k < 0 and gi % 4 == 3) or (k >= 0 and k % L == L - 1 and t in (2,))):
            e.ts(True)
        if trpos[0] == NN * 10 and not p2bar:
            p2bar.append(1)
            e.lgwait(lambda g: g[0] == "T")
            e("s_barrier")
    assert ppos[0] == 70 and trpos[0] == NN * 10 and p2bar and not pend and nred[0] == 2
    e.ts(True)
    e("s_nop 7")
    for dt in range(5):
        d = ACC2 + dt * 4
        for j in range(3):
            e.lgwait(lambda g: g == ("RR", j, dt))
            for r in range(0, 4, 2):
                s_ = RB[j * 5 + dt] + r
                e(f"v_pk_add_f32 v[{d+r}:{d+r+1}], v[{d+r}:{d+r+1}], v[{s_}:{s_+1}]")
        O = RB[dt]
        e(f"v_cvt_pk_bf16_f32 v{O}, v{d}, v{d+1}")
        e(f"v_cvt_pk_bf16_f32 v{O+1}, v{d+2}, v{d+3}")
        e.vmem(f"buffer_store_dwordx2 v[{O}:{O+1}], v{vOS}, {S(SOUT)}, s{sOO} offen offset:{dt*32} {A.ofl.replace('_',' ')}", ("O",))
    e.ts(True)


RB = [ACC2 + 20 + 4 * k for k in range(15)]


def diag_dump():
    if not A.diag:
        return
    e("s_waitcnt lgkmcnt(0)")
    if A.diag == 5:
        e("s_cmp_lg_u32 s2, 8")
        e("s_cbranch_scc1 L_end")
        e(f"s_sub_u32 s{sT0}, s{64+2*A.pk}, s64")
        e(f"s_lshl_b32 s{sT0}, s{sT0}, 1")
        e(f"s_min_u32 s{sT0}, s{sT0}, 20000")
        e("s_mov_b32 s2, 0")
        e.label("L_probe")
        e("s_memrealtime s[64:65]")
        e("s_add_u32 s2, s2, 1")
        e("s_waitcnt lgkmcnt(0)")
        e("s_cmp_gt_u32 s2, 100000")
        e("s_cbranch_scc1 L_end")
        e("s_sub_u32 s66, s64, s90")
        e(f"s_cmp_lt_u32 s66, s{sT0}")
        e("s_cbranch_scc1 L_probe")
        return
    if A.diag >= 2:
        e(f"s_cmp_lg_u32 s3, 0")
        e("s_cbranch_scc1 L_end")
        e(f"s_cmp_ge_u32 s{sSLOT}, 28")
        e("s_cbranch_scc1 L_end" if A.diag != 4 else "s_cbranch_scc0 L_end")
        e("v_mov_b32 v2, 0")
        for k in range(14):
            e(f"s_sub_u32 s{sT0}, s{64+2*k}, s{sNON}")
            e(f"v_writelane_b32 v2, s{sT0}, {k}")
        e("v_lshlrev_b32 v3, 2, v1")
        e("v_add_u32 v3, 8, v3")
        e("v_cmp_gt_u32 vcc, 14, v1")
        e("v_mov_b32 v4, 0x1000000")
        e("v_cndmask_b32 v3, v4, v3, vcc")
        e(f"buffer_atomic_{'smax' if A.diag == 3 else 'add'} v2, v3, {S(SDBG)}, 0 offen sc1")
        return
    e(f"s_lshl_b32 s{sT0}, s2, 2")
    e(f"s_add_u32 s{sT0}, s{sT0}, s3")
    e(f"s_lshl_b32 s{sT0}, s{sT0}, 8")
    e(f"s_add_u32 s{sT0}, s{sT0}, {DIAG_OFF}")
    for k in range(16):
        e(f"v_mov_b32 v2, s{64+2*k}")
        e(f"v_mov_b32 v3, s{65+2*k}")
        e(f"buffer_store_dwordx2 v[2:3], v{vZ}, {S(SWS)}, s{sT0} offen offset:{8*k}")
        e("s_nop 1")


def dma(it, part):
    st = it % NS
    if A.split:
        if part == 0:
            e(f"s_add_u32 m0, s{sLDSW}, {st*32768}")
            if it > 0:
                e(f"s_add_u32 s{sKB}, s{sKB}, 1")
                e(f"s_cmp_eq_u32 s{sKB}, 10")
                e(f"s_cselect_b32 s{sKB}, 0, s{sKB}")
            e(f"s_mul_i32 s{sXO}, s{sKB}, s{sWB}")
            e(f"s_add_u32 s{sXO}, s{sXO}, s{sXB}")
        if part == 4:
            e(f"s_add_u32 m0, s{sLDSW}, {st*32768+4096}")
            e(f"s_add_u32 s{sXO}, s{sXO}, s{sWO}")
        e.vmem(f"buffer_load_dwordx4 v{vX+(part&3)}, {S(SX)}, s{sXO} offen offset:{1024*(part&3)} lds", ("D", it))
        return
    if part == 0:
        e(f"s_add_u32 m0, s{sLDSW}, {st*32768}")
        if it > 0:
            e(f"s_add_u32 s{sKB}, s{sKB}, 1")
            e(f"s_cmp_eq_u32 s{sKB}, 10")
            e(f"s_cselect_b32 s{sKB}, 0, s{sKB}")
        e(f"s_lshl_b32 s{sXO}, s{sKB}, 7")
        e(f"s_add_u32 s{sXO}, s{sXO}, s{sXB}")
    if part == 4:
        e(f"s_add_u32 m0, s{sLDSW}, {st*32768+16384}")
        e(f"s_mul_i32 s{sWO}, s{sKB}, {64*3456}")
        e(f"s_add_u32 s{sWO}, s{sWO}, s{sWB}")
    if part < 4:
        e.vmem(f"buffer_load_dwordx4 v{vX+part}, {S(SX)}, s{sXO} offen offset:{1024*part} lds", ("D", it))
    else:
        e.vmem(f"buffer_load_dwordx4 v{vW+part-4}, {S(SW1)}, s{sWO} offen offset:{1024*(part-4)} lds", ("D", it))


def frag_reads(n, half):
    it, ks = divmod(n, 4)
    st = it % NS
    j, so = st >> 1, (st & 1) * 32768
    f = FR[n & 1]
    ft = tt = half
    for q in range(2):
        e.lds(f"ds_read_b64_tr_b16 v[{f+ft*4+2*q}:{f+ft*4+2*q+1}], v{vAa+j*2+ft} offset:{so+ks*4096+q*1024}", ("A", n, ft))
    e.lds(f"ds_read_b128 {V(f+8+tt*4)}, v{vB+j*4+ks} offset:{so+tt*4096}", ("B", n, tt))


def mfma1(n, ft, tt):
    f = FR[n & 1]
    a = acc(ft, tt)
    c = "0" if n == 0 else V(a, 16)
    e(f"v_mfma_f32_32x32x16_bf16 {V(a,16)}, {V(f+ft*4)}, {V(f+8+tt*4)}, {c}")


def gemm_role():
    if A.map1 == 47:
        e(f"s_mul_i32 s{sT0}, s{sSLOT}, 37")
        e(f"s_lshr_b32 s{sT0}, s{sT0}, 8")
        e(f"s_mul_i32 s{sT1}, s{sT0}, 7")
        e(f"s_sub_u32 s{sT1}, s{sSLOT}, s{sT1}")
        if A.rot1:
            e(f"s_mul_i32 s{sKB}, s{sT1}, 3")
            e(f"s_mul_i32 s{sT2}, s{sT0}, 5")
            e(f"s_lshr_b32 s{sT2}, s{sT2}, 1")
            e(f"s_add_u32 s{sKB}, s{sKB}, s{sT2}")
            e(f"s_lshr_b32 s{sT2}, s{sXCD}, 1")
            e(f"s_add_u32 s{sKB}, s{sKB}, s{sT2}")
            e(f"s_and_b32 s{sT2}, s{sXCD}, 1")
            e(f"s_add_u32 s{sKB}, s{sKB}, s{sT2}")
        e(f"s_lshr_b32 s{sRB}, s{sXCD}, 1")
        e(f"s_lshl_b32 s{sRB}, s{sRB}, 2")
        e(f"s_add_u32 s{sRB}, s{sRB}, s{sT0}")
        e(f"s_and_b32 s{sNT}, s{sXCD}, 1")
        e(f"s_mul_i32 s{sNT}, s{sNT}, 7")
        e(f"s_add_u32 s{sNT}, s{sNT}, s{sT1}")
    else:
        e(f"s_cmp_ge_u32 s{sSLOT}, 14")
        e(f"s_cselect_b32 s{sT0}, 1, 0")
        e(f"s_cselect_b32 s{sT1}, 14, 0")
        e(f"s_sub_u32 s{sNT}, s{sSLOT}, s{sT1}")
        e(f"s_lshl_b32 s{sRB}, s{sXCD}, 1")
        e(f"s_add_u32 s{sRB}, s{sRB}, s{sT0}")
        if A.rot1:
            e(f"s_mul_i32 s{sKB}, s{sNT}, 3")
            e(f"s_mul_i32 s{sT2}, s{sT0}, 5")
            e(f"s_add_u32 s{sKB}, s{sKB}, s{sT2}")
            e(f"s_add_u32 s{sKB}, s{sKB}, s{sXCD}")
    if A.rot1:
        e(f"s_mul_i32 s{sT2}, s{sKB}, 205")
        e(f"s_lshr_b32 s{sT2}, s{sT2}, 11")
        e(f"s_mul_i32 s{sT2}, s{sT2}, 10")
        e(f"s_sub_u32 s{sKB}, s{sKB}, s{sT2}")
    else:
        e(f"s_mov_b32 s{sKB}, 0")
    if A.split:
        e(f"s_lshl_b32 s{sLDSW}, s3, 13")
        e(f"s_lshl_b32 s{sT0}, s{sRB}, 1")
        e(f"s_add_u32 s{sT0}, s{sT0}, s3")
        e(f"s_mul_i32 s{sXB}, s{sT0}, {64*1280}")
        e(f"s_and_b32 s{sT1}, s3, 1")
        e(f"s_mul_i32 s{sT1}, s{sT1}, {32*3456}")
        e(f"s_lshl_b32 s{sT0}, s{sNT}, 8")
        e(f"s_add_u32 s{sT1}, s{sT1}, s{sT0}")
        e(f"s_cmp_ge_u32 s3, 2")
        e(f"s_cselect_b32 s{sXB}, s{sT1}, s{sXB}")
        e(f"s_mov_b32 s{sWB}, 128")
        e(f"s_mov_b32 s{sWO}, {32*1280}")
        e(f"s_cselect_b32 s{sWB}, {64*3456}, s{sWB}")
        e(f"s_cselect_b32 s{sWO}, {16*3456}, s{sWO}")
    else:
        e(f"s_lshl_b32 s{sLDSW}, s3, 12")
        e(f"s_lshl_b32 s{sT0}, s{sRB}, 2")
        e(f"s_add_u32 s{sT0}, s{sT0}, s3")
        e(f"s_mul_i32 s{sXB}, s{sT0}, {32*1280}")
        e(f"s_mul_i32 s{sWB}, s3, {16*3456}")
        e(f"s_lshl_b32 s{sT0}, s{sNT}, 8")
        e(f"s_add_u32 s{sWB}, s{sWB}, s{sT0}")
    e("v_lshrrev_b32 v2, 3, v1")
    e("v_mul_u32_u24 v2, 1280, v2")
    e("v_and_b32 v3, 7, v1")
    e("v_lshrrev_b32 v4, 4, v1")
    e("v_xor_b32 v5, v3, v4")
    e("v_xor_b32 v6, 4, v5")
    e("v_lshl_add_u32 v5, v5, 4, v2")
    e("v_lshl_add_u32 v6, v6, 4, v2")
    for i in range(4):
        e(f"v_add_u32 v{vX+i}, {i*(10240-1024)}, v{5+(i&1)}")
    e("v_mul_u32_u24 v2, 3456, v4")
    e("v_and_b32 v3, 15, v1")
    e("v_lshlrev_b32 v5, 2, v4")
    e("v_xor_b32 v3, v3, v5")
    e("v_lshl_add_u32 v2, v3, 4, v2")
    for i in range(4):
        e(f"v_add_u32 v{vW+i}, {i*(13824-1024)}, v2")
    if A.split:
        e(f"s_cmp_ge_u32 s3, 2")
        e(f"s_cselect_b64 vcc, -1, 0")
        for i in range(4):
            e(f"v_cndmask_b32 v{vX+i}, v{vX+i}, v{vW+i}, vcc")
        e("s_waitcnt lgkmcnt(0)")
        e(f"s_cselect_b64 s[{SX}:{SX+1}], s[6:7], s[4:5]")
        e(f"s_mov_b32 s{SX+2}, {2048*1280}")
        e(f"s_cselect_b32 s{SX+2}, {640*3456}, s{SX+2}")
        e(f"s_mov_b32 s{SX+3}, 0x00020000")
    else:
        e("s_waitcnt lgkmcnt(0)")
        srd(SX, 4, 2048 * 1280)
        srd(SW1, 6, 640 * 3456)
    allq = [(it, p) for it in range(NIT) for p in range(8)]
    for _ in range(min(A.P, 10)):
        dma(*allq.pop(0))
    srd(SWS, 14, WS_SIZE)
    srd(SOUT, 10, 2048 * 1280)
    srd(SDBG, 12, 256)
    e(f"s_mov_b32 s10, {1728*1280}")
    e(f"s_mov_b32 s11, 0x00020000")
    if A.pf:
        code_prefetch()
    e("v_and_b32 v2, 31, v1")
    e("v_lshrrev_b32 v3, 5, v1")
    e("v_bfe_u32 v4, v1, 1, 3")
    e(f"s_and_b32 s{sT0}, s3, 1")
    e(f"s_lshr_b32 s{sT1}, s3, 1")
    e(f"s_lshl_b32 s{sT2}, s{sT0}, 13")
    e(f"v_lshl_add_u32 v2, v2, 7, s{sT2}")
    for ks in range(4):
        e(f"v_or_b32 v5, {2*ks}, v3")
        e("v_xor_b32 v5, v5, v4")
        e(f"v_lshl_add_u32 v{vB+ks}, v5, 4, v2")
    nj = (NS + 1) // 2
    for j in range(1, nj):
        for ks in range(4):
            e(f"v_add_u32 v{vB+j*4+ks}, {j*65536}, v{vB+ks}")
    e("v_bfe_u32 v2, v1, 2, 2")
    e("v_lshl_add_u32 v5, v3, 3, v2")
    e("v_lshlrev_b32 v5, 8, v5")
    e("v_and_b32 v6, 1, v1")
    e("v_lshl_add_u32 v5, v6, 3, v5")
    e("v_add_u32 v5, 16384, v5")
    e("v_bfe_u32 v6, v1, 4, 1")
    e("v_bfe_u32 v7, v1, 1, 1")
    e("v_lshl_add_u32 v6, v6, 1, v7")
    e(f"s_lshl_b32 s{sT2}, s{sT1}, 3")
    e(f"v_or_b32 v6, s{sT2}, v6")
    e("v_lshlrev_b32 v2, 2, v2")
    for ft in range(2):
        e(f"v_or_b32 v7, {4*ft}, v6")
        e("v_xor_b32 v7, v7, v2")
        e(f"v_lshl_add_u32 v{vAa+ft}, v7, 4, v5")
    for j in range(1, nj):
        for ft in range(2):
            e(f"v_add_u32 v{vAa+j*2+ft}, {j*65536}, v{vAa+ft}")
    e("v_bfe_u32 v5, v1, 4, 1")
    e("v_and_b32 v6, 15, v1")
    e("v_lshl_add_u32 v6, v3, 4, v6")
    e("v_lshlrev_b32 v6, 4, v6")
    e(f"v_lshl_add_u32 v{vHS}, v5, 10, v6")
    e(f"s_lshl_b32 s{sT2}, s{sRB}, 1")
    e(f"s_add_u32 s{sT2}, s{sT2}, s{sT0}")
    e(f"s_lshl_b32 s{sT3}, s{sNT}, 1")
    e(f"s_add_u32 s{sT3}, s{sT3}, s{sT1}")
    e(f"s_mov_b32 s{sREG}, s{sT2}")
    e(f"s_lshl_b32 s{sHF}, s{sT2}, 5")
    e(f"s_add_u32 s{sHF}, s{sHF}, s{sT3}")
    e(f"s_lshl_b32 s{sHF}, s{sHF}, 7")
    e(f"s_add_u32 s{sHF}, s{sHF}, {FLAG_OFF}")
    e(f"s_mul_i32 s{sT2}, s{sT2}, 27")
    e(f"s_add_u32 s{sT2}, s{sT2}, s{sT3}")
    e(f"s_lshl_b32 s{sH0}, s{sT2}, 13")
    e(f"s_cmp_ge_u32 s{sT3}, 27")
    e(f"s_cselect_b32 s{sH0}, {BIG}, s{sH0}")
    e(f"s_cselect_b32 s{sHF}, {BIG}, s{sHF}")
    e(f"s_add_u32 s{sH1}, s{sH0}, 4096")
    p2_setup()
    get_xcc()
    for _ in range(A.P - min(A.P, 10)):
        dma(*allq.pop(0))
    if A.pfn < 0:
        w2_prefetch()
    e.ts()
    e.vmwait(lambda t: t == ("D", 0))
    e("s_barrier")
    e.ts()
    frag_reads(0, 0)
    frag_reads(0, 1)
    freed = [NS - 1]
    wlim = [0]
    WLIM = {5: 1, 6: 3, 7: 4, 8: 6}

    pok = [False]

    def filler(slot=0):
        if allq:
            if allq[0][0] <= freed[0]:
                dma(*allq.pop(0))
        elif slot < A.srate and not A.noside:
            w0 = wpos[0]
            w_dma(1, wlim[0])
            if wpos[0] == w0 and pok[0] and ppos[0] - NN * 5 < A.wil:
                w_loads(1)
    for it in range(NIT):
        for ks in range(4):
            n = it * 4 + ks
            e.lgwait(lambda t: t in (("A", n, 0), ("B", n, 0)))
            mfma1(n, 0, 0)
            if ks == 3 and it < NIT - 1:
                e.lg = []
                e.vmwait(lambda t: t == ("D", it + 1), "lgkmcnt(0)")
                e("s_barrier")
                freed[0] = it + NS
                wlim[0] = WLIM.get(it, 0)
            if n + 1 < 4 * NIT:
                frag_reads(n + 1, 0)
            e.lgwait(lambda t: t == ("A", n, 1))
            mfma1(n, 1, 0)
            if n + 1 < 4 * NIT:
                frag_reads(n + 1, 1)
            e.lgwait(lambda t: t == ("B", n, 1))
            mfma1(n, 0, 1)
            filler()
            if not A.spn and n >= A.pfn and (n - A.pfn) % A.pfs == 0 and (n - A.pfn) // A.pfs < A.pfp:
                w2_prefetch((n - A.pfn) // A.pfs)
            if it == NIT - 1 and not A.noside:
                w_dma(1, wlim[0])
            if n == A.nn0:
                get_nonce("n1")
            if n == A.zf:
                reg_store()
            if n >= A.qn and (n - A.qn) % A.qs == 0 and (n - A.qn) // A.qs < QP:
                w2p_prefetch((n - A.qn) // A.qs)
            if n == A.qh:
                w2p_half_prefetch()
            if n == A.rn0:
                if A.loc:
                    poll_issue("r", vRG, vPD, SWS)
            if n == A.rn1:
                comb_decide()
            if n == A.np:
                poll_issue("n1", 9, 4, SDBG)
            if n == A.fn0:
                poll_issue("w2a", vFW, 6, SWS)
            if n == A.fn1:
                spin("w2a", vFW, 6, SWS)
                pok[0] = True
            mfma1(n, 1, 1)
            filler(1)
        if it % 3 == 0 or A.tsm:
            e.ts()

    assert not allq
    e("s_barrier")


def gemm_epilogue_stores():
    e("s_nop 6")
    vm0 = list(e.vm)
    for var in ((0, 1) if A.loc else (1,)):
        e.vm = list(vm0)
        if A.loc and var == 0:
            e(f"s_cmp_lg_u32 s{sLOC}, 0")
            e("s_cbranch_scc1 L_epi_far")
        if A.loc and var == 1:
            e.label("L_epi_far")
        k = 0
        for (ft, tt) in [(0, 0), (1, 0), (0, 1), (1, 1)]:
            a = acc(ft, tt)
            h = HOUT + k * 8
            k += 1
            for c in range(2):
                for p in range(4 * c, 4 * c + 4):
                    e(f"v_cvt_pk_bf16_f32 v{h+p}, v{a+2*p}, v{a+2*p+1}")
                for p in range(4 * c, 4 * c + 4):
                    e(f"v_pk_max_i16 v{h+p}, v{h+p}, 0")
                e.vmem(f"buffer_store_dwordx4 {V(h+4*c)}, v{vHS}, {S(SWS)}, s{sH0+ft} offen offset:{tt*2048+c*512}{' sc1' if var else ' '+A.sfl.replace('_',' ')}", ("S",))
        if A.loc and var == 0:
            e("s_branch L_epi_done")
    if A.loc:
        e.label("L_epi_done")


def repack_role():
    sWI, sL = sRB, sLDSW
    e(f"s_sub_u32 s{sWI}, s{sSLOT}, 28")
    e(f"s_lshl_b32 s{sWI}, s{sWI}, 3")
    e(f"s_add_u32 s{sWI}, s{sWI}, s{sXCD}")
    e(f"s_lshl_b32 s{sWI}, s{sWI}, 2")
    e(f"s_add_u32 s{sWI}, s{sWI}, s3")
    e(f"s_mul_i32 s{sL}, s3, {NU*4096}")
    e("v_lshrrev_b32 v2, 3, v1")
    e("v_mul_u32_u24 v2, 1280, v2")
    e("v_and_b32 v3, 7, v1")
    e("v_bfe_u32 v4, v1, 4, 2")
    e("v_lshlrev_b32 v4, 1, v4")
    e("v_xor_b32 v3, v3, v4")
    e("v_lshl_add_u32 v2, v3, 4, v2")
    for i in range(4):
        e(f"v_add_u32 v{vX+i}, {i*(10240-1024)}, v2")
    e("s_waitcnt lgkmcnt(0)")
    srd(SDBG, 12, 256)
    e("s_cmp_lg_u32 s{0}, 124".format(sWI))
    e("s_cbranch_scc1 L_nononce")
    e(f"s_memrealtime s[{sNON}:{sNON+1}]")
    e("s_waitcnt lgkmcnt(0)")
    e(f"s_or_b32 s{sNON+1}, s{sNON+1}, 0x40000000")
    e(f"v_mov_b32 v2, s{sNON}")
    e(f"v_mov_b32 v3, s{sNON+1}")
    e("v_lshlrev_b32 v4, 24, v1")
    e(f"buffer_store_dwordx2 v[2:3], v4, {S(SDBG)}, 0 offen sc1")
    e.label("L_nononce")
    get_xcc()
    srd(SOUT, 10, 2048 * 1280)
    e(f"s_mov_b32 s10, {1728*1280}")
    e(f"s_mov_b32 s11, 0x00020000")
    for k in range(NU):
        e(f"s_add_u32 s{sT0}, s{sWI}, {128*k}")
        e(f"s_mul_i32 s{sT1}, s{sT0}, 205")
        e(f"s_lshr_b32 s{sT1}, s{sT1}, 11")
        e(f"s_mul_i32 s{sT2}, s{sT1}, 10")
        e(f"s_sub_u32 s{sT2}, s{sT0}, s{sT2}")
        e(f"s_mul_i32 s{sT1}, s{sT1}, 40960")
        e(f"s_lshl_b32 s{sT2}, s{sT2}, 7")
        e(f"s_add_u32 s{sT1}, s{sT1}, s{sT2}")
        e(f"s_add_u32 s{sT1}, s{sT1}, {NN*163840}")
        e(f"s_cmp_ge_u32 s{sT0}, {NUNIT}")
        e(f"s_cselect_b32 s{sT1}, {BIG}, s{sT1}")
        e(f"s_add_u32 m0, s{sL}, {k*4096}")
        e("s_nop 0")
        for i in range(4):
            e.vmem(f"buffer_load_dwordx4 v{vX+i}, {S(SW2)}, s{sT1} offen offset:{1024*i} lds", ("R", k))
    srd(SWS, 14, WS_SIZE)
    if not A.spn:
        w2_prefetch()
    if A.pf:
        code_prefetch()
    e("v_lshrrev_b32 v2, 5, v1")
    e("v_bfe_u32 v3, v1, 4, 1")
    e("v_bfe_u32 v4, v1, 2, 2")
    e("v_lshlrev_b32 v2, 4, v2")
    e("v_lshl_add_u32 v2, v3, 2, v2")
    e("v_add_u32 v2, v2, v4")
    e("v_lshlrev_b32 v2, 7, v2")
    e("v_and_b32 v5, 1, v1")
    e("v_lshl_add_u32 v2, v5, 3, v2")
    e(f"v_add_u32 v2, s{sL}, v2")
    e("v_lshrrev_b32 v4, 1, v4")
    e("v_lshl_add_u32 v3, v3, 1, v4")
    e("v_lshlrev_b32 v3, 1, v3")
    e("v_bfe_u32 v5, v1, 1, 1")
    for b in range(4):
        e(f"v_xor_b32 v6, {2*b}, v3")
        e("v_or_b32 v6, v6, v5")
        e(f"v_lshl_add_u32 v{vW+b}, v6, 4, v2")
    e(f"s_mov_b32 s{sREG}, 0")
    p2_setup()
    poll_issue("n2", 9, 4, SDBG)
    e.ts()
    R = 24
    for k in range(NU):
        e.vmwait(lambda t: t == ("R", k))
        for b in range(4):
            r = R + (k * 4 + b) * 4
            for q in range(2):
                e.lds(f"ds_read_b64_tr_b16 v[{r+2*q}:{r+2*q+1}], v{vW+b} offset:{k*4096+q*1024}", ("T", k, b))
        e(f"s_add_u32 s{sT0}, s{sWI}, {128*k}")
        e(f"s_lshl_b32 s{sT1}, s{sT0}, 12")
        e(f"s_add_u32 s{sT1}, s{sT1}, {W2P_OFF}")
        e(f"s_cmp_ge_u32 s{sT0}, {NUNIT}")
        e(f"s_cselect_b32 s{sT1}, {BIG}, s{sT1}")
        for b in range(4):
            r = R + (k * 4 + b) * 4
            e.lgwait(lambda t: t == ("T", k, b))
            e.vmem(f"buffer_store_dwordx4 {V(r)}, v{vWL}, {S(SWS)}, s{sT1} offen offset:{b*1024} sc1", ("S", k))
        if k == 0:
            get_nonce("n2")
            if A.sreg:
                reg_store()
    if A.spn:
        spare_nat_prefetch()
    e.ts()
    for k in range(NU):
        e.vmwait(lambda t: t == ("S", k))
        e(f"s_add_u32 s{sT0}, s{sWI}, {128*k}")
        e(f"s_lshl_b32 s{sT1}, s{sT0}, 7")
        e(f"s_add_u32 s{sT1}, s{sT1}, {W2F_OFF}")
        e(f"s_cmp_ge_u32 s{sT0}, {NUNIT}")
        e(f"s_cselect_b32 s{sT1}, {BIG}, s{sT1}")
        e.vmem(f"buffer_store_dwordx2 v[2:3], v{vZ}, {S(SWS)}, s{sT1} offen sc1", ("F", k))
    if not A.sreg:
        reg_store()
    e.ts()
    e("s_barrier")
    if A.spq:
        spare_pack_prefetch()


def kdesc(name):
    return f""".amdhsa_kernel {name}
  .amdhsa_next_free_vgpr 512
  .amdhsa_next_free_sgpr 102
  .amdhsa_accum_offset 256
  .amdhsa_group_segment_fixed_size 0
  .amdhsa_kernarg_size 48
  .amdhsa_user_sgpr_count 2
  .amdhsa_user_sgpr_kernarg_segment_ptr 1
  .amdhsa_system_sgpr_workgroup_id_x 1
.end_amdhsa_kernel"""


LDS = max(NS * 32768, 81920)
hdr = [f"; @launch grid=(256,1,1) block=(256,1,1) lds={LDS}",
       '.amdgcn_target "amdgcn-amd-amdhsa--gfx950"', ".text"]

e.l.append(f".globl {KN}\n.p2align 8\n.type {KN},@function\n{KN}:")
e("s_load_dwordx8 s[4:11], s[0:1], 0")
e(f"s_getpc_b64 s[{sPC}:{sPC+1}]")
e.label("L_pc")
e("s_load_dwordx4 s[12:15], s[0:1], 32")
e(f"s_cmp_ge_u32 s2, 256")
e(f"s_cbranch_scc1 L_end")
e("v_and_b32 v1, 63, v0")
e("v_lshrrev_b32 v2, 6, v0")
e(f"s_and_b32 s{sXCD}, s2, 7")
e("v_readfirstlane_b32 s3, v2")
e(f"s_lshr_b32 s{sSLOT}, s2, 3")
e.ts()
e(f"s_cmp_ge_u32 s{sSLOT}, 28")
e("s_cbranch_scc1 L_repack")
gemm_role()
if not A.efirst:
    w_dma(70)
if A.rn1 >= 40:
    comb_decide()
gemm_epilogue_stores()
w_dma(70)
e.ts()
if A.fn1 >= 40:
    spin("w2a", vFW, 6, SWS)
for b in range(A.wpre):
    w_loads(1)
    w_tr(3)
e.vmwait(lambda t: t == ("S",))
h_flag_store()
e.ts()
w_loads(70 - ppos[0] - A.wlate - A.wp2)
e.ts()
nts_join = e.nts
vm_join = list(e.vm)
lg_join = list(e.lg)
tr_join = trpos[0]
pp_join = ppos[0]
e("s_branch L_join")
e.label("L_repack")
e.vm = []
e.lg = []
e.nts = 1
wpos[0] = 0
trpos[0] = 0
ppos[0] = NN * 5
repack_role()
if not A.sord:
    w_dma(70)
poll_issue("w2b", vFW, 6, SWS)
spin("w2b", vFW, 6, SWS, slp=A.ssleep)
e.ts()
w_loads(pp_join - NN * 5)
if A.sord:
    w_dma(70)
w_tr(tr_join)
assert trpos[0] == tr_join and ppos[0] == pp_join
e("s_waitcnt vmcnt(0) lgkmcnt(0)")
while e.nts < nts_join and not A.tsm and not A.ts2:
    e.ts()
e.vm = vm_join
e.lg = lg_join
if A.tsm:
    e.nts = 13
e.label("L_join")
poll_issue("h", vFL, 6, SWS)
w_loads(A.wlate)
w_tr(10 * A.wjoin - trpos[0])
spin("h", vFL, 6, SWS)
e.ts()
phase2_main()
diag_dump()
e.label("L_end")
e.label("L_codeend")
e("s_endpgm")

body = "\n".join(e.l)
ninst = sum(1 for x in e.l if x.startswith("    "))
npf = (ninst * 8 + 8191) // 8192
pf = "\n".join(f"    s_min_u32 s{sT0}, s{sJ}, L_codeend-L_pc\n    s_load_dword s63, s[{sPC}:{sPC+1}], s{sT0}\n    s_add_u32 s{sJ}, s{sJ}, 8192" for k in range(npf))
body = body.replace("@@PF@@", pf)
print("\n".join(hdr) + "\n" + body + "\n" + '.section .rodata,"a"\n.p2align 6\n' + kdesc(KN) + "\n")
```

```python
import sys, argparse
ap = argparse.ArgumentParser()
ap.add_argument("--diag", type=int, default=0)
ap.add_argument("--ns", type=int, default=5)
ap.add_argument("--pf", type=int, default=1)
ap.add_argument("--P", type=int, default=20)
ap.add_argument("--rot1", type=int, default=1)
ap.add_argument("--rot2", type=int, default=1)
ap.add_argument("--map1", type=int, default=214)
ap.add_argument("--nn0", type=int, default=24)
ap.add_argument("--nn", type=int, default=6)
ap.add_argument("--wpre", type=int, default=20)
ap.add_argument("--wlate", type=int, default=0)
ap.add_argument("--fn0", type=int, default=36)
ap.add_argument("--trl", type=int, default=0)
ap.add_argument("--wjoin", type=int, default=12)
ap.add_argument("--ssleep", type=int, default=8)
ap.add_argument("--spf", type=int, default=0)
ap.add_argument("--w2pf", type=int, default=1)
ap.add_argument("--pfn", type=int, default=12)
ap.add_argument("--fn1", type=int, default=99)
ap.add_argument("--srate", type=int, default=2)
ap.add_argument("--pfs", type=int, default=1)
ap.add_argument("--pfp", type=int, default=8)
ap.add_argument("--loc", type=int, default=1)
ap.add_argument("--tsm", type=int, default=0)
ap.add_argument("--zn", type=int, default=10)
ap.add_argument("--zs", type=int, default=1)
ap.add_argument("--zf", type=int, default=26)
ap.add_argument("--rn0", type=int, default=35)
ap.add_argument("--rn1", type=int, default=39)
ap.add_argument("--wfirst", type=int, default=10)
ap.add_argument("--w2late", type=int, default=0)
ap.add_argument("--zplain", type=int, default=0)
ap.add_argument("--qn", type=int, default=99)
ap.add_argument("--qs", type=int, default=2)
ap.add_argument("--split", type=int, default=0)
ap.add_argument("--noside", type=int, default=0)
ap.add_argument("--tl", type=int, default=5)
ap.add_argument("--qp", type=int, default=2)
ap.add_argument("--sord", type=int, default=1)
ap.add_argument("--np", type=int, default=2)
ap.add_argument("--hd", type=int, default=3)
ap.add_argument("--sleep", type=int, default=4)
ap.add_argument("--clk", type=str, default="7,11")
ap.add_argument("--spq", type=int, default=0)
ap.add_argument("--spn", type=int, default=0)
ap.add_argument("--efirst", type=int, default=1)
ap.add_argument("--sreg", type=int, default=1)
ap.add_argument("--wp2", type=int, default=0)
ap.add_argument("--wp2s", type=int, default=1)
ap.add_argument("--qh", type=int, default=99)
ap.add_argument("--qsleep", type=int, default=4)
ap.add_argument("--ts2", type=int, default=0)
ap.add_argument("--hfl", type=str, default="sc1")
ap.add_argument("--sfl", type=str, default="")
ap.add_argument("--ofl", type=str, default="")
ap.add_argument("--pk", type=int, default=0)
ap.add_argument("--la", type=int, default=1)
ap.add_argument("--pfe", type=int, default=0)
ap.add_argument("--ts0", type=int, default=0)
ap.add_argument("--fbar", type=int, default=0)
ap.add_argument("--p2b", type=int, default=0)
ap.add_argument("--wst", type=int, default=0)
ap.add_argument("--tlb", type=int, default=99)
ap.add_argument("--tlm", type=int, default=7)
ap.add_argument("--P0", type=int, default=10)
ap.add_argument("--w1pf", type=int, default=0)
ap.add_argument("--xpf", type=int, default=0)
ap.add_argument("--w1x", type=int, default=0)
ap.add_argument("--wil", type=int, default=99)
ap.add_argument("--pfl", type=int, default=8)
A = ap.parse_args()
A.pfp = (A.nn * 10 + A.pfl - 1) // A.pfl
CLK = [int(x) for x in A.clk.split(",")]

KN = "standalone__dense_activation_relu__prompt_kernel"
HP_OFF = 0
W2P_OFF = 0x700000
FLAG_OFF = 0xA00000
W2F_OFF = FLAG_OFF + 0x40000
REG_OFF = FLAG_OFF + 0x60000
DIAG_OFF = 0xB00000
WS_SIZE = 0xC00000
BIG = 0x40000000
NS = A.ns
NIT = 10
NN = A.nn
NP = 14 - NN
NU = (NP * 40 - 20 + 127) // 128
NUNIT = NP * 40 - 20
assert NS == 5 and A.hd < 6
SPIN = 20000


class Em:
    def __init__(s):
        s.l = []
        s.vm = []
        s.lg = []
        s.nts = 0

    def __call__(s, x):
        for y in x.split("\n"):
            s.l.append("    " + y)

    def label(s, x):
        s.l.append(x + ":")

    def vmem(s, x, tag):
        s(x)
        s.vm.append(tag)

    def vmwait(s, pred, also=""):
        idx = -1
        for i, t in enumerate(s.vm):
            if pred(t):
                idx = i
        if idx < 0:
            if also:
                s("s_waitcnt " + also)
            return
        n = min(len(s.vm) - 1 - idx, 63)
        s(f"s_waitcnt vmcnt({n}) {also}".rstrip())
        s.vm = s.vm[len(s.vm) - n:] if n else []

    def lds(s, x, tag):
        s(x)
        s.lg.append(tag)

    def lgwait(s, pred):
        idx = -1
        for i, t in enumerate(s.lg):
            if pred(t):
                idx = i
        if idx < 0:
            return
        n = min(len(s.lg) - 1 - idx, 15)
        s(f"s_waitcnt lgkmcnt({n})")
        s.lg = s.lg[len(s.lg) - n:] if n else []

    def clk(s, k):
        if A.diag:
            s(f"s_memtime s[{92+2*k}:{93+2*k}]")

    def ts(s, force=False):
        if A.ts2 and not force and s.nts > 0:
            return
        if A.diag:
            k = s.nts
            if A.tsm and k >= 13:
                k = 13
                s.nts = 12
            assert k < 14
            s(f"s_memrealtime s[{64+2*k}:{65+2*k}]")
            if k in CLK:
                s.clk(CLK.index(k))
            s.nts += 1


e = Em()

SX, SW1, SWS, SOUT, SDBG = 16, 20, 24, 28, 32
SW2 = 8
sKW, sKH, sPWB, sPHB = 36, 37, 38, 39
sXCD, sSLOT, sRB, sNT, sT0, sT1, sT2, sT3 = 40, 41, 42, 43, 44, 45, 46, 47
sLDSW, sXO, sWO, sH0, sH1 = 48, 49, 50, 51, 52
sT64, sD80, sP2W, sP2H, sCNT = 53, 54, 55, 56, 57
sNON = 58
sPC = 60
sJ = 62
sKB, sXB, sWB, sBADK, sHF, sOO = 96, 97, 98, 99, 100, 101


def srd(b, ptr, size):
    e(f"s_mov_b32 s{b}, s{ptr}")
    e(f"s_mov_b32 s{b+1}, s{ptr+1}")
    e(f"s_mov_b32 s{b+2}, {size}")
    e(f"s_mov_b32 s{b+3}, 0x00020000")


def S(b):
    return f"s[{b}:{b+3}]"


def V(b, n=4):
    return f"v[{b}:{b+n-1}]"


vX, vW = 208, 212
vB, vAa = 216, 228
FR = [24, 40, 176, 192][:A.la+1]
ACC = 56
HOUT = 176
vHS = 8
ACC2 = 176
WX = 136
HR = 24
NHR = 6
vWL, vWL2 = 10, 11
vHL = 12
vRW = 16
vRR = 19
vOS = 20
vFL = 21
vFW = 22
vWD = 120
vWT = 125
sWM = 4
sPPB = 5
sKW2, sKH2 = 6, 7
sXCC, sLOC, sPFB = 12, 13, 14
vZ = 23
vEXP = 130
vPD = 132
vRG = 134
vPZ = 136
sHS = [48, 49, 50, 96, 97, 98]
sPO = 15
sREG = 0


def acc(ft, tt):
    return ACC + (tt * 2 + ft) * 16


def wreg(i, dt):
    if i < 12:
        b = (i * 5 + dt) * 4
        return f"a[{b}:{b+3}]"
    b = WX + ((i - 12) * 5 + dt) * 4
    return f"v[{b}:{b+3}]"


def wreg2(i, dt, q):
    if i < 12:
        b = (i * 5 + dt) * 4 + 2 * q
        return f"a[{b}:{b+1}]"
    b = WX + ((i - 12) * 5 + dt) * 4 + 2 * q
    return f"v[{b}:{b+1}]"


def w2_prefetch(k=None):
    if not A.w2pf:
        return
    per = A.pfl
    for kk in (range(A.pfp) if k is None else [k]):
        if kk == 0:
            e(f"s_lshl_b32 s{sPFB}, s{sSLOT}, 2")
            e(f"s_add_u32 s{sPFB}, s{sPFB}, s3")
            e(f"s_mul_i32 s{sPFB}, s{sPFB}, {NN*1280}")
            e(f"v_lshrrev_b32 v128, {(64//per).bit_length()-1}, v1")
            e(f"v_lshlrev_b32 v128, 7, v128")
        else:
            e(f"s_add_u32 s{sPFB}, s{sPFB}, {per*128}")
        e.vmem(f"buffer_load_dword v129, v128, {S(SW2)}, s{sPFB} offen", ("PF",))


def w1_prefetch():
    e(f"s_lshl_b32 s63, s{sSLOT}, 2")
    e(f"s_add_u32 s63, s63, s3")
    if A.w1x:
        e(f"s_mul_i32 s62, s{sXCD}, 14")
        e(f"s_add_u32 s63, s63, s62")
        e(f"s_sub_u32 s62, s63, 112")
        e(f"s_cmp_ge_u32 s63, 112")
        e(f"s_cselect_b32 s63, s62, s63")
    e(f"v_lshlrev_b32 v200, 7, v1")
    if A.xpf:
        e(f"s_lshl_b32 s62, s63, 13")
        e(f"s_mul_i32 s{sT0}, s{sXCD}, {256*1280}")
        e(f"s_add_u32 s62, s62, s{sT0}")
        e(f"s_cmp_ge_u32 s63, 40")
        e(f"s_cselect_b32 s62, {BIG}, s62")
        e.vmem(f"buffer_load_dword v204, v200, {S(SX)}, s62 offen", ("PF",))
    e(f"s_lshl_b32 s63, s63, 13")
    for j in range(3):
        if j:
            e(f"s_add_u32 s63, s63, {112*8192}")
        e.vmem(f"buffer_load_dword v{201+j}, v200, {S(SW1)}, s63 offen", ("PF",))


def tlb_warm(g):
    if A.tlm & 1:
        e(f"v_and_b32 v200, 1, v1")
        e(f"v_mul_u32_u24 v200, {15*1280}, v200")
        e.vmem(f"buffer_load_dword v201, v200, {S(SOUT)}, s{sOO} offen", ("PF",))
    if g and (A.tlm & 2):
        e.vmem(f"buffer_load_dword v202, v{vZ}, {S(SWS)}, s{sH0} offen", ("PF",))
    if A.tlm & 4:
        e(f"v_and_b32 v203, 1, v1")
        e(f"v_mul_u32_u24 v203, 0x300000, v203")
        e(f"v_add_u32 v203, 0x6F0000, v203")
        e.vmem(f"buffer_load_dword v204, v203, {S(SWS)}, 0 offen", ("PF",))


def spare_nat_prefetch():
    per = NN * 80
    e(f"s_sub_u32 s{sPFB}, s{sSLOT}, 28")
    e(f"s_lshl_b32 s{sPFB}, s{sPFB}, 2")
    e(f"s_add_u32 s{sPFB}, s{sPFB}, s3")
    e(f"s_mul_i32 s{sPFB}, s{sPFB}, {per*128}")
    e(f"v_lshlrev_b32 v128, 7, v1")
    k = 0
    while k < per:
        if per - k < 64:
            e(f"v_min_u32 v128, {(per-k-1)*128}, v128")
        e.vmem(f"buffer_load_dword v129, v128, {S(SW2)}, s{sPFB} offen", ("PF",))
        k += 64
        if k < per:
            e(f"s_add_u32 s{sPFB}, s{sPFB}, {64*128}")


def spare_pack_prefetch():
    C = (NUNIT + 15) // 16
    e(f"s_lshl_b32 s{sPFB}, s3, 2")
    e(f"s_add_u32 s{sPFB}, s{sPFB}, s{sSLOT}")
    e(f"s_sub_u32 s{sPFB}, s{sPFB}, 28")
    e(f"s_mul_i32 s{sPFB}, s{sPFB}, {C}")
    e(f"v_min_u32 v128, {C-1}, v1")
    e(f"v_add_u32 v128, s{sPFB}, v128")
    e(f"v_min_u32 v128, {NUNIT-1}, v128")
    e(f"v_lshlrev_b32 v128, 7, v128")
    e(f"v_add_u32 v128, {W2F_OFF}, v128")
    poll_issue("w2q", 128, 6, SWS)
    spin("w2q", 128, 6, SWS, slp=A.qsleep)
    e(f"s_lshl_b32 s{sPFB}, s{sPFB}, 5")
    e(f"v_add_u32 v128, s{sPFB}, v1")
    n = C * 32
    k = 0
    while k < n:
        e(f"v_min_u32 v135, {NUNIT*32-1}, v128")
        e(f"v_lshlrev_b32 v135, 7, v135")
        e(f"s_mov_b32 s{sT0}, {W2P_OFF}")
        e.vmem(f"buffer_load_dword v129, v135, {S(SWS)}, s{sT0} offen sc1", ("PF",))
        k += 64
        if k < n:
            if n - k < 64:
                e(f"v_min_u32 v135, {n-k-1}, v1")
                e(f"v_add3_u32 v128, s{sPFB}, v135, {k}" if k <= 64 else f"v_add_u32 v128, {k}, v135\nv_add_u32 v128, s{sPFB}, v128")
            else:
                e(f"v_add_u32 v128, 64, v128")


def get_xcc():
    e(f"s_getreg_b32 s{sXCC}, hwreg(HW_REG_XCC_ID)")
    e(f"s_and_b32 s{sXCC}, s{sXCC}, 15")


LPW = (NUNIT * 32 + 111) // 112
QP = A.qp
QL = (LPW + QP - 1) // QP
assert QL <= 64 or A.qn >= 40


def w2p_prefetch(k):
    if k == 0:
        e(f"s_lshl_b32 s{sJ}, s{sSLOT}, 2")
        e(f"s_add_u32 s{sJ}, s{sJ}, s3")
        e(f"s_mul_i32 s{sJ}, s{sJ}, {QL*QP*128}")
        e(f"s_add_u32 s{sJ}, s{sJ}, {W2P_OFF}")
        e(f"v_min_u32 v135, {QL-1}, v1")
        e(f"v_lshlrev_b32 v135, 7, v135")
    else:
        e(f"s_add_u32 s{sJ}, s{sJ}, {QL*128}")
    e.vmem(f"buffer_load_dword v129, v135, {S(SWS)}, s{sJ} offen sc1", ("PF",))


def w2p_half_prefetch():
    rows = NUNIT // 10
    tot = rows * 160
    per = (tot + 111) // 112
    assert per <= 64
    e(f"s_lshl_b32 s{sJ}, s{sSLOT}, 2")
    e(f"s_add_u32 s{sJ}, s{sJ}, s3")
    e(f"s_mul_i32 s{sJ}, s{sJ}, {per}")
    e(f"v_min_u32 v135, {per-1}, v1")
    e(f"v_add_u32 v135, s{sJ}, v135")
    e(f"v_min_u32 v135, {tot-1}, v135")
    e(f"v_lshrrev_b32 v128, 5, v135")
    e(f"v_mul_u32_u24 v128, 205, v128")
    e(f"v_lshrrev_b32 v128, 10, v128")
    e(f"v_mul_u32_u24 v128, {40960-160*128}, v128")
    e(f"v_lshl_add_u32 v135, v135, 7, v128")
    e(f"s_mov_b32 s{sJ}, {W2P_OFF}")
    e.vmem(f"buffer_load_dword v129, v135, {S(SWS)}, s{sJ} offen sc1", ("PF",))


def set_exp():
    e(f"s_xor_b32 s{sT0}, s{sNON}, s{sXCC}")
    e(f"v_mov_b32 v4, s{sT0}")
    e(f"v_mov_b32 v5, s{sNON+1}")
    e(f"v_mov_b32 v2, s{sNON}")
    e(f"v_mov_b32 v3, s{sNON+1}")


def reg_store():
    if A.loc:
        e.vmem(f"buffer_store_dwordx2 v[4:5], v{vZ}, {S(SWS)}, s{sREG} offen sc1", ("G",))


def comb_decide():
    if not A.loc:
        return
    e.vmwait(lambda t: t == ("P", "r"))
    e(f"v_cmp_ne_u64 vcc, v[4:5], v[{vPD}:{vPD+1}]")
    e(f"s_or_b32 s{sLOC}, vcc_lo, vcc_hi")


def h_flag_store():
    if A.loc:
        e(f"s_cmp_lg_u32 s{sLOC}, 0")
        e("s_cbranch_scc1 L_fl_far")
        e(f"buffer_store_dwordx2 v[2:3], v{vZ}, {S(SWS)}, s{sHF} offen")
        e("s_branch L_fl_done")
        e.label("L_fl_far")
    e.vmem(f"buffer_store_dwordx2 v[2:3], v{vZ}, {S(SWS)}, s{sHF} offen sc1", ("F",))
    if A.loc:
        e.label("L_fl_done")


def code_prefetch():
    e(f"s_lshl_b32 s{sJ}, s{sSLOT}, 2")
    e(f"s_add_u32 s{sJ}, s{sJ}, s3")
    e(f"s_lshl_b32 s{sJ}, s{sJ}, 6")
    e.l.append("@@PF@@")


def p2_setup():
    e(f"s_lshl_b32 s{sT64}, s{sXCD}, 2")
    e(f"s_lshr_b32 s{sT0}, s{sSLOT}, 3")
    e(f"s_add_u32 s{sT64}, s{sT64}, s{sT0}")
    e(f"s_and_b32 s{sD80}, s{sSLOT}, 7")
    e(f"s_mul_i32 s{sPWB}, s3, 40960")
    e(f"s_mul_i32 s{sT0}, s{sD80}, 160")
    e(f"s_add_u32 s{sPWB}, s{sPWB}, s{sT0}")
    e(f"s_mul_i32 s{sWM}, s3, 5120")
    e(f"s_mul_i32 s{sPPB}, s3, 40960")
    e(f"s_mul_i32 s{sT0}, s{sD80}, 5120")
    e(f"s_add_u32 s{sPPB}, s{sPPB}, s{sT0}")
    e(f"s_add_u32 s{sPPB}, s{sPPB}, {W2P_OFF}")
    e(f"s_mul_i32 s{sPHB}, s{sT64}, 54")
    e(f"s_add_u32 s{sPHB}, s{sPHB}, s3")
    e(f"s_lshl_b32 s{sPHB}, s{sPHB}, 12")
    e(f"s_cmp_ge_u32 s3, 2")
    e(f"s_cselect_b32 s{sBADK}, {NP-1}, 99")
    if A.rot2:
        e(f"s_and_b32 s{sT0}, s{sT64}, 3")
        e(f"s_lshl_b32 s{sT1}, s{sT0}, 1")
        e(f"s_add_u32 s{sKW}, s{sT1}, s{sD80}")
        for _ in range(13 // NN):
            e(f"s_cmp_ge_u32 s{sKW}, {NN}")
            e(f"s_cselect_b32 s{sT1}, {NN}, 0")
            e(f"s_sub_u32 s{sKW}, s{sKW}, s{sT1}")
        if A.rot2 == 2:
            e(f"s_mul_i32 s{sT0}, s{sT0}, {NP}")
            e(f"s_add_u32 s{sT0}, s{sT0}, 2")
            e(f"s_lshr_b32 s{sT0}, s{sT0}, 2")
        else:
            e(f"s_lshl_b32 s{sT0}, s{sT0}, 1")
        e(f"s_add_u32 s{sKW2}, s{sT0}, s{sD80}")
        for _ in range(18 // NP):
            e(f"s_cmp_ge_u32 s{sKW2}, {NP}")
            e(f"s_cselect_b32 s{sT1}, {NP}, 0")
            e(f"s_sub_u32 s{sKW2}, s{sKW2}, s{sT1}")
    else:
        e(f"s_mov_b32 s{sKW}, {NN-1}")
        e(f"s_mov_b32 s{sKW2}, {NP-1}")
    e(f"s_mov_b32 s{sKH}, s{sKW}")
    e(f"s_mov_b32 s{sKH2}, s{sKW2}")
    e(f"v_lshlrev_b32 v{vWL}, 4, v1")
    e(f"v_add_u32 v{vWL2}, 4096, v{vWL}")
    for t in range(4):
        e(f"s_add_u32 s{sT0}, s3, {t}")
        e(f"s_and_b32 s{sT0}, s{sT0}, 3")
        e(f"s_lshl_b32 s{sT1}, s{sT0}, 10")
        e(f"v_add_u32 v{vHL+t}, s{sT1}, v{vWL}")
        if t > 0:
            e(f"s_mul_i32 s{sT1}, s{sT0}, 15360")
            e(f"s_add_u32 s{sT1}, s{sT1}, {(t-1)*5120}")
            e(f"v_add_u32 v{vRW+t-1}, s{sT1}, v{vWL}")
    e(f"s_mul_i32 s{sT1}, s3, 15360")
    e(f"v_add_u32 v{vRR}, s{sT1}, v{vWL}")
    e("v_and_b32 v2, 15, v1")
    e("v_mul_u32_u24 v2, 1280, v2")
    e("v_lshrrev_b32 v3, 4, v1")
    e(f"v_lshl_add_u32 v{vOS}, v3, 3, v2")
    e(f"s_lshl_b32 s{sT0}, s{sT64}, 2")
    e(f"s_add_u32 s{sT0}, s{sT0}, s3")
    e(f"s_mul_i32 s{sOO}, s{sT0}, {16*1280}")
    e(f"s_mul_i32 s{sT1}, s{sD80}, 160")
    e(f"s_add_u32 s{sOO}, s{sOO}, s{sT1}")
    e(f"v_min_u32 v2, 13, v1")
    e(f"s_lshr_b32 s{sT1}, s3, 1")
    e(f"v_lshl_add_u32 v2, v2, 1, s{sT1}")
    e(f"v_min_u32 v2, 26, v2")
    e(f"s_lshl_b32 s{sT0}, s{sT64}, 12")
    e(f"s_add_u32 s{sT0}, s{sT0}, {FLAG_OFF}")
    e(f"v_lshl_add_u32 v{vFL}, v2, 7, s{sT0}")
    e(f"v_min_u32 v2, 7, v1")
    e(f"s_lshl_b32 s{sT0}, s{sREG}, 10")
    e(f"s_add_u32 s{sT0}, s{sT0}, {REG_OFF}")
    e(f"v_lshl_add_u32 v{vRG}, v2, 7, s{sT0}")
    e(f"s_lshl_b32 s{sREG}, s{sT64}, 3")
    e(f"s_add_u32 s{sREG}, s{sREG}, s{sD80}")
    e(f"s_lshl_b32 s{sREG}, s{sREG}, 7")
    e(f"s_add_u32 s{sREG}, s{sREG}, {REG_OFF}")
    e(f"s_cmp_eq_u32 s3, 0")
    e(f"s_cselect_b32 s{sREG}, s{sREG}, {BIG}")
    e(f"v_min_u32 v2, {2*NP-1}, v1")
    e(f"v_lshrrev_b32 v3, 1, v2")
    e(f"v_lshl_add_u32 v3, v3, 2, s3")
    e(f"v_min_u32 v3, {4*NP-3}, v3")
    e(f"v_mul_u32_u24 v3, 10, v3")
    e(f"v_and_b32 v2, 1, v2")
    e(f"s_mul_i32 s{sT0}, s{sD80}, 5")
    e(f"s_lshr_b32 s{sT0}, s{sT0}, 2")
    e(f"v_add3_u32 v2, v2, v3, s{sT0}")
    e(f"v_lshlrev_b32 v2, 7, v2")
    e(f"v_add_u32 v{vFW}, {W2F_OFF}, v2")
    for j in range(5):
        e(f"v_add_u32 v2, {64*j}, v1")
        e(f"v_mul_u32_u24 v3, 205, v2")
        e(f"v_lshrrev_b32 v3, 11, v3")
        e(f"v_mul_u32_u24 v4, {1280-160}, v3")
        e(f"v_lshl_add_u32 v4, v2, 4, v4")
        if j in (1, 2, 3):
            e(f"v_subrev_u32 v{vWD+j}, {1024*j}, v4")
        elif j == 4:
            e(f"v_mov_b32 v{vWD+4}, v4")
        else:
            e(f"v_mov_b32 v{vWD}, v4")
    e("v_lshrrev_b32 v2, 5, v1")
    e("v_bfe_u32 v3, v1, 4, 1")
    e("v_bfe_u32 v4, v1, 2, 2")
    e("v_lshlrev_b32 v2, 4, v2")
    e("v_lshl_add_u32 v2, v3, 2, v2")
    e("v_add_u32 v2, v2, v4")
    e("v_mul_u32_u24 v2, 160, v2")
    e("v_and_b32 v3, 3, v1")
    e("v_lshl_add_u32 v2, v3, 3, v2")
    e(f"v_add_u32 v{vWT}, s{sWM}, v2")
    e(f"v_add_u32 v{vWT+1}, 61440, v{vWT}")
    e(f"v_add_u32 v{vWT+2}, 122880, v{vWT}")
    e(f"v_lshlrev_b32 v{vZ}, 24, v1")
    e("v_mov_b32 v9, 0")


wq = [(i, dt) for i in range(14) for dt in range(5)]
wpos = [0]


def adv(sk, so, sb, stride, mod, add=0, bad=False):
    e(f"s_add_u32 s{sk}, s{sk}, 1")
    e(f"s_cmp_eq_u32 s{sk}, {mod}")
    e(f"s_cselect_b32 s{sk}, 0, s{sk}")
    e(f"s_mul_i32 s{so}, s{sk}, {stride}")
    e(f"s_add_u32 s{so}, s{so}, s{sb}")
    if add:
        e(f"s_add_u32 s{so}, s{so}, {add}")
    if bad:
        e(f"s_cmp_eq_u32 s{sk}, s{sBADK}")
        e(f"s_cselect_b32 s{so}, {BIG}, s{so}")


trpos = [0]
ppos = [NN * 5]


def w_dma(n, lim=14):
    for _ in range(n):
        if wpos[0] >= NN * 5:
            return
        i, j = wq[wpos[0]]
        if i >= lim:
            return
        if j == 0:
            adv(sKW, sP2W, sPWB, 163840, NN)
            e(f"s_add_u32 m0, s{sWM}, {i*20480}")
            e("s_nop 0")
        if j == 4:
            e(f"s_add_u32 m0, s{sWM}, {i*20480+4096}")
            e("s_nop 0")
        wpos[0] += 1
        e.vmem(f"buffer_load_dwordx4 v{vWD+j}, {S(SW2)}, s{sP2W} offen offset:{1024*(j&3)} lds", ("W", i))


def w_tr(n):
    for _ in range(n):
        i, r = divmod(trpos[0], 10)
        if i >= NN:
            return
        assert wpos[0] >= (i + 1) * 5
        if r == 0:
            e.vmwait(lambda t: t == ("W", i))
        dt, q = divmod(r, 2)
        off = (i % 3) * 20480 + dt * 32 + q * 1280
        e.lds(f"ds_read_b64_tr_b16 {wreg2(i,dt,q)}, v{vWT+i//3} offset:{off}", ("T", i, dt))
        trpos[0] += 1


def w_loads(n):
    for _ in range(n):
        if ppos[0] >= 70:
            return
        i, dt = wq[ppos[0]]
        ppos[0] += 1
        if dt == 0:
            adv(sKW2, sP2W, sPPB, 163840, NP, bad=True)
        if dt < 4:
            e.vmem(f"buffer_load_dwordx4 {wreg(i,dt)}, v{vWL}, {S(SWS)}, s{sP2W} offen offset:{dt*1024} sc1", ("W", i))
        else:
            e.vmem(f"buffer_load_dwordx4 {wreg(i,dt)}, v{vWL2}, {S(SWS)}, s{sP2W} offen sc1", ("W", i))


def h_loads(i, tsel=None):
    for t in (range(4) if tsel is None else [tsel]):
        so = sHS[i % 6]
        if t == 0:
            if i < NN:
                adv(sKH, so, sPHB, 16384, NN)
            else:
                adv(sKH2, so, sPHB, 16384, NP, add=NN * 16384, bad=True)
        b = HR + (i % NHR) * 16 + t * 4
        e.vmem(f"buffer_load_dwordx4 {V(b)}, v{vHL+t}, {S(SWS)}, s{so} offen sc1", ("H", i, t))


def spin(name, voff, reg, srdb, cmp_nonce=True, slp=None):
    e.vmwait(lambda t: t == ("P", name))
    e(f"s_mov_b32 s{sCNT}, 0")
    e.label(f"L_spin_{name}")
    if cmp_nonce:
        e(f"v_cmp_eq_u64 vcc, s[{sNON}:{sNON+1}], v[{reg}:{reg+1}]")
    else:
        e(f"v_cmp_ne_u64 vcc, 0, v[{reg}:{reg+1}]")
    e(f"s_add_u32 s{sCNT}, s{sCNT}, 1")
    e("s_cmp_eq_u64 vcc, exec")
    e(f"s_cbranch_scc1 L_ok_{name}")
    e(f"s_cmp_ge_u32 s{sCNT}, {SPIN}")
    e(f"s_cbranch_scc1 L_ok_{name}")
    e(f"s_sleep {A.sleep if slp is None else slp}")
    e(f"buffer_load_dwordx2 v[{reg}:{reg+1}], v{voff}, {S(srdb)}, 0 offen sc1")
    e("s_waitcnt vmcnt(0)")
    e(f"s_branch L_spin_{name}")
    e.label(f"L_ok_{name}")


def poll_issue(name, voff, reg, srdb):
    e.vmem(f"buffer_load_dwordx2 v[{reg}:{reg+1}], v{voff}, {S(srdb)}, 0 offen sc1", ("P", name))


def get_nonce(tag, slp=None):
    e.vmwait(lambda t: t == ("P", tag))
    e(f"s_mov_b32 s{sCNT}, 0")
    e.label(f"L_spin_{tag}")
    e(f"v_readfirstlane_b32 s{sNON}, v4")
    e(f"v_readfirstlane_b32 s{sNON+1}, v5")
    e(f"s_add_u32 s{sCNT}, s{sCNT}, 1")
    e(f"s_cmp_lg_u32 s{sNON+1}, 0")
    e(f"s_cbranch_scc1 L_ok_{tag}")
    e(f"s_cmp_ge_u32 s{sCNT}, {SPIN}")
    e(f"s_cbranch_scc1 L_ok_{tag}")
    e(f"s_sleep {A.sleep if slp is None else slp}")
    e(f"buffer_load_dwordx2 v[4:5], v9, {S(SDBG)}, 0 offen sc1")
    e("s_waitcnt vmcnt(0)")
    e(f"s_branch L_spin_{tag}")
    e.label(f"L_ok_{tag}")
    e("s_nop 1")
    set_exp()


p2bar = []


def phase2_main():
    HD = A.hd
    L = A.tl
    I0 = 14 - L
    order = [(i, t) for i in range(I0) for t in range(4)]
    order += [(i, t) for t in (1, 2, 3, 0) for i in range(I0, 14)]
    hq = list(order)
    hso = set()

    cur = [0]
    owe = [0]

    def h_next():
        owe[0] += 1
        while owe[0] and h_one():
            owe[0] -= 1

    def h_one():
        if not hq:
            return False
        i, t = hq[0]
        if i >= NHR and order.index((i - NHR, t)) >= cur[0]:
            return False
        hq.pop(0)
        if i not in hso:
            for j in range(14):
                if j not in hso and j <= (i if i < I0 else 13):
                    hso.add(j)
                    so = sHS[j % 6]
                    if j < NN:
                        adv(sKH, so, sPHB, 16384, NN)
                    else:
                        adv(sKH2, so, sPHB, 16384, NP, add=NN * 16384, bad=True)
        b = HR + (i % NHR) * 16 + t * 4
        e.vmem(f"buffer_load_dwordx4 {V(b)}, v{vHL+t}, {S(SWS)}, s{sHS[i%6]} offen {A.hfl.replace('_',' ')}", ("H", i, t))
        return True

    for _ in range(4 * HD):
        h_next()
    e.ts(True)
    wseen = set()
    pend = []
    R = 0
    nred = [0]
    for gi, (i, t) in enumerate(order):
        cur[0] = gi
        assert (i, t) not in hq
        e.vmwait(lambda g: g == ("H", i, t) or g == ("W", i))
        if i not in wseen:
            wseen.add(i)
            assert i >= NN or trpos[0] >= (i + 1) * 10
            assert ppos[0] >= (i + 1) * 5
            e.lgwait(lambda g: g[0] == "T" and g[1] == i)
        hb = HR + (i % NHR) * 16 + t * 4
        k = gi - 4 * I0
        for dt in range(5):
            d = ACC2 + (t * 5 + dt) * 4
            c = "0" if i == 0 else V(d)
            e(f"v_mfma_f32_16x16x32_bf16 {V(d)}, {wreg(i,dt)}, {V(hb)}, {c}")
            if dt == 1:
                h_next()
            if dt >= 2:
                w_tr(1)
            if dt == 3 and gi % A.wp2s == 0:
                w_loads(1)
            if pend and (dt == 4 or (dt == 2 and k % L > 0)):
                assert p2bar
                pt, pd = pend.pop(0)
                e.lds(f"ds_write_b128 v{vRW+pt-1}, {V(ACC2+(pt*5+pd)*4)} offset:{pd*1024}", ("RW",))
                if not pend and pt == 3:
                    nred[0] = 1
            elif nred[0] == 1 and dt == 4:
                nred[0] = 2
                e("s_waitcnt lgkmcnt(0)")
                e.lg = []
                e("s_barrier")
                for j in range(3):
                    for d2 in range(5):
                        e.lds(f"ds_read_b128 {V(RB[j*5+d2])}, v{vRR} offset:{j*5120+d2*1024}", ("RR", j, d2))
        if k >= 0 and k % L == L - 1 and t != 0:
            pend += [(t, dt) for dt in range(5)]
        if A.ts2 and ((k < 0 and gi % 4 == 3) or (k >= 0 and k % L == L - 1 and t in (2,))):
            e.ts(True)
        if trpos[0] == NN * 10 and not p2bar and gi >= A.p2b:
            p2bar.append(1)
            e.lgwait(lambda g: g[0] == "T")
            e("s_barrier")
    assert ppos[0] == 70 and trpos[0] == NN * 10 and p2bar and not pend and nred[0] == 2
    e.ts(True)
    e("s_nop 7")
    for dt in range(5):
        d = ACC2 + dt * 4
        for j in range(3):
            e.lgwait(lambda g: g == ("RR", j, dt))
            for r in range(0, 4, 2):
                s_ = RB[j * 5 + dt] + r
                e(f"v_pk_add_f32 v[{d+r}:{d+r+1}], v[{d+r}:{d+r+1}], v[{s_}:{s_+1}]")
        O = RB[dt]
        e(f"v_cvt_pk_bf16_f32 v{O}, v{d}, v{d+1}")
        e(f"v_cvt_pk_bf16_f32 v{O+1}, v{d+2}, v{d+3}")
        e.vmem(f"buffer_store_dwordx2 v[{O}:{O+1}], v{vOS}, {S(SOUT)}, s{sOO} offen offset:{dt*32} {A.ofl.replace('_',' ')}", ("O",))
    e.ts(True)


RB = [ACC2 + 20 + 4 * k for k in range(15)]


def diag_dump():
    if not A.diag:
        return
    e("s_waitcnt lgkmcnt(0)")
    if A.diag == 5:
        e("s_cmp_lg_u32 s2, 8")
        e("s_cbranch_scc1 L_end")
        e(f"s_sub_u32 s{sT0}, s{64+2*A.pk}, s64")
        e(f"s_lshl_b32 s{sT0}, s{sT0}, 1")
        e(f"s_min_u32 s{sT0}, s{sT0}, 20000")
        e("s_mov_b32 s2, 0")
        e.label("L_probe")
        e("s_memrealtime s[64:65]")
        e("s_add_u32 s2, s2, 1")
        e("s_waitcnt lgkmcnt(0)")
        e("s_cmp_gt_u32 s2, 100000")
        e("s_cbranch_scc1 L_end")
        e("s_sub_u32 s66, s64, s90")
        e(f"s_cmp_lt_u32 s66, s{sT0}")
        e("s_cbranch_scc1 L_probe")
        return
    if A.diag >= 2:
        e(f"s_cmp_lg_u32 s3, 0")
        e("s_cbranch_scc1 L_end")
        e(f"s_cmp_ge_u32 s{sSLOT}, 28")
        e("s_cbranch_scc1 L_end" if A.diag != 4 else "s_cbranch_scc0 L_end")
        e("v_mov_b32 v2, 0")
        for k in range(14):
            e(f"s_sub_u32 s{sT0}, s{64+2*k}, s{sNON}")
            e(f"v_writelane_b32 v2, s{sT0}, {k}")
        e("v_lshlrev_b32 v3, 2, v1")
        e("v_add_u32 v3, 8, v3")
        e("v_cmp_gt_u32 vcc, 14, v1")
        e("v_mov_b32 v4, 0x1000000")
        e("v_cndmask_b32 v3, v4, v3, vcc")
        e(f"buffer_atomic_{'smax' if A.diag == 3 else 'add'} v2, v3, {S(SDBG)}, 0 offen sc1")
        return
    e(f"s_lshl_b32 s{sT0}, s2, 2")
    e(f"s_add_u32 s{sT0}, s{sT0}, s3")
    e(f"s_lshl_b32 s{sT0}, s{sT0}, 8")
    e(f"s_add_u32 s{sT0}, s{sT0}, {DIAG_OFF}")
    for k in range(16):
        e(f"v_mov_b32 v2, s{64+2*k}")
        e(f"v_mov_b32 v3, s{65+2*k}")
        e(f"buffer_store_dwordx2 v[2:3], v{vZ}, {S(SWS)}, s{sT0} offen offset:{8*k}")
        e("s_nop 1")


def dma(it, part):
    st = it % NS
    if A.split:
        if part == 0:
            e(f"s_add_u32 m0, s{sLDSW}, {st*32768}")
            if it > 0:
                e(f"s_add_u32 s{sKB}, s{sKB}, 1")
                e(f"s_cmp_eq_u32 s{sKB}, 10")
                e(f"s_cselect_b32 s{sKB}, 0, s{sKB}")
            e(f"s_mul_i32 s{sXO}, s{sKB}, s{sWB}")
            e(f"s_add_u32 s{sXO}, s{sXO}, s{sXB}")
        if part == 4:
            e(f"s_add_u32 m0, s{sLDSW}, {st*32768+4096}")
            e(f"s_add_u32 s{sXO}, s{sXO}, s{sWO}")
        e.vmem(f"buffer_load_dwordx4 v{vX+(part&3)}, {S(SX)}, s{sXO} offen offset:{1024*(part&3)} lds", ("D", it))
        return
    if part == 0:
        e(f"s_add_u32 m0, s{sLDSW}, {st*32768}")
        if it > 0:
            e(f"s_add_u32 s{sKB}, s{sKB}, 1")
            e(f"s_cmp_eq_u32 s{sKB}, 10")
            e(f"s_cselect_b32 s{sKB}, 0, s{sKB}")
        e(f"s_lshl_b32 s{sXO}, s{sKB}, 7")
        e(f"s_add_u32 s{sXO}, s{sXO}, s{sXB}")
    if part == 4:
        e(f"s_add_u32 m0, s{sLDSW}, {st*32768+16384}")
        e(f"s_mul_i32 s{sWO}, s{sKB}, {64*3456}")
        e(f"s_add_u32 s{sWO}, s{sWO}, s{sWB}")
    if part < 4:
        e.vmem(f"buffer_load_dwordx4 v{vX+part}, {S(SX)}, s{sXO} offen offset:{1024*part} lds", ("D", it))
    else:
        e.vmem(f"buffer_load_dwordx4 v{vW+part-4}, {S(SW1)}, s{sWO} offen offset:{1024*(part-4)} lds", ("D", it))


def frag_reads(n, half):
    it, ks = divmod(n, 4)
    st = it % NS
    j, so = st >> 1, (st & 1) * 32768
    f = FR[n % len(FR)]
    ft = tt = half
    for q in range(2):
        e.lds(f"ds_read_b64_tr_b16 v[{f+ft*4+2*q}:{f+ft*4+2*q+1}], v{vAa+j*2+ft} offset:{so+ks*4096+q*1024}", ("A", n, ft))
    e.lds(f"ds_read_b128 {V(f+8+tt*4)}, v{vB+j*4+ks} offset:{so+tt*4096}", ("B", n, tt))


def mfma1(n, ft, tt):
    f = FR[n % len(FR)]
    a = acc(ft, tt)
    c = "0" if n == 0 else V(a, 16)
    e(f"v_mfma_f32_32x32x16_bf16 {V(a,16)}, {V(f+ft*4)}, {V(f+8+tt*4)}, {c}")


def gemm_role():
    if A.map1 == 47:
        e(f"s_mul_i32 s{sT0}, s{sSLOT}, 37")
        e(f"s_lshr_b32 s{sT0}, s{sT0}, 8")
        e(f"s_mul_i32 s{sT1}, s{sT0}, 7")
        e(f"s_sub_u32 s{sT1}, s{sSLOT}, s{sT1}")
        if A.rot1:
            e(f"s_mul_i32 s{sKB}, s{sT1}, 3")
            e(f"s_mul_i32 s{sT2}, s{sT0}, 5")
            e(f"s_lshr_b32 s{sT2}, s{sT2}, 1")
            e(f"s_add_u32 s{sKB}, s{sKB}, s{sT2}")
            e(f"s_lshr_b32 s{sT2}, s{sXCD}, 1")
            e(f"s_add_u32 s{sKB}, s{sKB}, s{sT2}")
            e(f"s_and_b32 s{sT2}, s{sXCD}, 1")
            e(f"s_add_u32 s{sKB}, s{sKB}, s{sT2}")
        e(f"s_lshr_b32 s{sRB}, s{sXCD}, 1")
        e(f"s_lshl_b32 s{sRB}, s{sRB}, 2")
        e(f"s_add_u32 s{sRB}, s{sRB}, s{sT0}")
        e(f"s_and_b32 s{sNT}, s{sXCD}, 1")
        e(f"s_mul_i32 s{sNT}, s{sNT}, 7")
        e(f"s_add_u32 s{sNT}, s{sNT}, s{sT1}")
    else:
        e(f"s_cmp_ge_u32 s{sSLOT}, 14")
        e(f"s_cselect_b32 s{sT0}, 1, 0")
        e(f"s_cselect_b32 s{sT1}, 14, 0")
        e(f"s_sub_u32 s{sNT}, s{sSLOT}, s{sT1}")
        e(f"s_lshl_b32 s{sRB}, s{sXCD}, 1")
        e(f"s_add_u32 s{sRB}, s{sRB}, s{sT0}")
        if A.rot1:
            e(f"s_mul_i32 s{sKB}, s{sNT}, 3")
            e(f"s_mul_i32 s{sT2}, s{sT0}, 5")
            e(f"s_add_u32 s{sKB}, s{sKB}, s{sT2}")
            e(f"s_add_u32 s{sKB}, s{sKB}, s{sXCD}")
    if A.rot1:
        e(f"s_mul_i32 s{sT2}, s{sKB}, 205")
        e(f"s_lshr_b32 s{sT2}, s{sT2}, 11")
        e(f"s_mul_i32 s{sT2}, s{sT2}, 10")
        e(f"s_sub_u32 s{sKB}, s{sKB}, s{sT2}")
    else:
        e(f"s_mov_b32 s{sKB}, 0")
    if A.split:
        e(f"s_lshl_b32 s{sLDSW}, s3, 13")
        e(f"s_lshl_b32 s{sT0}, s{sRB}, 1")
        e(f"s_add_u32 s{sT0}, s{sT0}, s3")
        e(f"s_mul_i32 s{sXB}, s{sT0}, {64*1280}")
        e(f"s_and_b32 s{sT1}, s3, 1")
        e(f"s_mul_i32 s{sT1}, s{sT1}, {32*3456}")
        e(f"s_lshl_b32 s{sT0}, s{sNT}, 8")
        e(f"s_add_u32 s{sT1}, s{sT1}, s{sT0}")
        e(f"s_cmp_ge_u32 s3, 2")
        e(f"s_cselect_b32 s{sXB}, s{sT1}, s{sXB}")
        e(f"s_mov_b32 s{sWB}, 128")
        e(f"s_mov_b32 s{sWO}, {32*1280}")
        e(f"s_cselect_b32 s{sWB}, {64*3456}, s{sWB}")
        e(f"s_cselect_b32 s{sWO}, {16*3456}, s{sWO}")
    else:
        e(f"s_lshl_b32 s{sLDSW}, s3, 12")
        e(f"s_lshl_b32 s{sT0}, s{sRB}, 2")
        e(f"s_add_u32 s{sT0}, s{sT0}, s3")
        e(f"s_mul_i32 s{sXB}, s{sT0}, {32*1280}")
        e(f"s_mul_i32 s{sWB}, s3, {16*3456}")
        e(f"s_lshl_b32 s{sT0}, s{sNT}, 8")
        e(f"s_add_u32 s{sWB}, s{sWB}, s{sT0}")
    e("v_lshrrev_b32 v2, 3, v1")
    e("v_mul_u32_u24 v2, 1280, v2")
    e("v_and_b32 v3, 7, v1")
    e("v_lshrrev_b32 v4, 4, v1")
    e("v_xor_b32 v5, v3, v4")
    e("v_xor_b32 v6, 4, v5")
    e("v_lshl_add_u32 v5, v5, 4, v2")
    e("v_lshl_add_u32 v6, v6, 4, v2")
    for i in range(4):
        e(f"v_add_u32 v{vX+i}, {i*(10240-1024)}, v{5+(i&1)}")
    e("v_mul_u32_u24 v2, 3456, v4")
    e("v_and_b32 v3, 15, v1")
    e("v_lshlrev_b32 v5, 2, v4")
    e("v_xor_b32 v3, v3, v5")
    e("v_lshl_add_u32 v2, v3, 4, v2")
    for i in range(4):
        e(f"v_add_u32 v{vW+i}, {i*(13824-1024)}, v2")
    if A.split:
        e(f"s_cmp_ge_u32 s3, 2")
        e(f"s_cselect_b64 vcc, -1, 0")
        for i in range(4):
            e(f"v_cndmask_b32 v{vX+i}, v{vX+i}, v{vW+i}, vcc")
        e("s_waitcnt lgkmcnt(0)")
        e(f"s_cselect_b64 s[{SX}:{SX+1}], s[6:7], s[4:5]")
        e(f"s_mov_b32 s{SX+2}, {2048*1280}")
        e(f"s_cselect_b32 s{SX+2}, {640*3456}, s{SX+2}")
        e(f"s_mov_b32 s{SX+3}, 0x00020000")
    else:
        e("s_waitcnt lgkmcnt(0)")
        srd(SX, 4, 2048 * 1280)
        srd(SW1, 6, 640 * 3456)
    allq = [(it, p) for it in range(NIT) for p in range(8)]
    if A.w1pf == 3:
        w1_prefetch()
    if A.pf and A.pfe & 1:
        code_prefetch()
    if A.ts0:
        e.ts()
    for _ in range(min(A.P, A.P0)):
        dma(*allq.pop(0))
    if A.ts0:
        e.ts()
    if A.w1pf == 1:
        w1_prefetch()
    srd(SWS, 14, WS_SIZE)
    srd(SOUT, 10, 2048 * 1280)
    srd(SDBG, 12, 256)
    e(f"s_mov_b32 s10, {1728*1280}")
    e(f"s_mov_b32 s11, 0x00020000")
    if A.pf and not A.pfe & 1:
        code_prefetch()
    e("v_and_b32 v2, 31, v1")
    e("v_lshrrev_b32 v3, 5, v1")
    e("v_bfe_u32 v4, v1, 1, 3")
    e(f"s_and_b32 s{sT0}, s3, 1")
    e(f"s_lshr_b32 s{sT1}, s3, 1")
    e(f"s_lshl_b32 s{sT2}, s{sT0}, 13")
    e(f"v_lshl_add_u32 v2, v2, 7, s{sT2}")
    for ks in range(4):
        e(f"v_or_b32 v5, {2*ks}, v3")
        e("v_xor_b32 v5, v5, v4")
        e(f"v_lshl_add_u32 v{vB+ks}, v5, 4, v2")
    nj = (NS + 1) // 2
    for j in range(1, nj):
        for ks in range(4):
            e(f"v_add_u32 v{vB+j*4+ks}, {j*65536}, v{vB+ks}")
    e("v_bfe_u32 v2, v1, 2, 2")
    e("v_lshl_add_u32 v5, v3, 3, v2")
    e("v_lshlrev_b32 v5, 8, v5")
    e("v_and_b32 v6, 1, v1")
    e("v_lshl_add_u32 v5, v6, 3, v5")
    e("v_add_u32 v5, 16384, v5")
    e("v_bfe_u32 v6, v1, 4, 1")
    e("v_bfe_u32 v7, v1, 1, 1")
    e("v_lshl_add_u32 v6, v6, 1, v7")
    e(f"s_lshl_b32 s{sT2}, s{sT1}, 3")
    e(f"v_or_b32 v6, s{sT2}, v6")
    e("v_lshlrev_b32 v2, 2, v2")
    for ft in range(2):
        e(f"v_or_b32 v7, {4*ft}, v6")
        e("v_xor_b32 v7, v7, v2")
        e(f"v_lshl_add_u32 v{vAa+ft}, v7, 4, v5")
    for j in range(1, nj):
        for ft in range(2):
            e(f"v_add_u32 v{vAa+j*2+ft}, {j*65536}, v{vAa+ft}")
    e("v_bfe_u32 v5, v1, 4, 1")
    e("v_and_b32 v6, 15, v1")
    e("v_lshl_add_u32 v6, v3, 4, v6")
    e("v_lshlrev_b32 v6, 4, v6")
    e(f"v_lshl_add_u32 v{vHS}, v5, 10, v6")
    e(f"s_lshl_b32 s{sT2}, s{sRB}, 1")
    e(f"s_add_u32 s{sT2}, s{sT2}, s{sT0}")
    e(f"s_lshl_b32 s{sT3}, s{sNT}, 1")
    e(f"s_add_u32 s{sT3}, s{sT3}, s{sT1}")
    e(f"s_mov_b32 s{sREG}, s{sT2}")
    e(f"s_lshl_b32 s{sHF}, s{sT2}, 5")
    e(f"s_add_u32 s{sHF}, s{sHF}, s{sT3}")
    e(f"s_lshl_b32 s{sHF}, s{sHF}, 7")
    e(f"s_add_u32 s{sHF}, s{sHF}, {FLAG_OFF}")
    e(f"s_mul_i32 s{sT2}, s{sT2}, 27")
    e(f"s_add_u32 s{sT2}, s{sT2}, s{sT3}")
    e(f"s_lshl_b32 s{sH0}, s{sT2}, 13")
    e(f"s_cmp_ge_u32 s{sT3}, 27")
    e(f"s_cselect_b32 s{sH0}, {BIG}, s{sH0}")
    e(f"s_cselect_b32 s{sHF}, {BIG}, s{sHF}")
    e(f"s_add_u32 s{sH1}, s{sH0}, 4096")
    if A.ts0:
        e.ts()
    p2_setup()
    get_xcc()
    if A.ts0:
        e.ts()
    for _ in range(A.P - min(A.P, A.P0)):
        dma(*allq.pop(0))
    if A.w1pf == 2:
        w1_prefetch()
    if A.pfn < 0:
        w2_prefetch()
    e.ts()
    e.vmwait(lambda t: t == ("D", 0))
    e("s_barrier")
    e.ts()
    for q in range(A.la):
        frag_reads(q, 0)
        frag_reads(q, 1)
    freed = [NS - 1]
    wlim = [0]
    WLIM = {5: 1, 6: 3, 7: 4, 8: 6}

    pok = [False]

    def filler(slot=0):
        if allq:
            if allq[0][0] <= freed[0]:
                dma(*allq.pop(0))
        elif slot < A.srate and not A.noside:
            w0 = wpos[0]
            w_dma(1, wlim[0])
            if wpos[0] == w0 and pok[0] and ppos[0] - NN * 5 < A.wil:
                w_loads(1)
    for it in range(NIT):
        for ks in range(4):
            n = it * 4 + ks
            e.lgwait(lambda t: t in (("A", n, 0), ("B", n, 0)))
            mfma1(n, 0, 0)
            if ks == 4 - A.la and it < NIT - 1:
                e.lg = []
                e.vmwait(lambda t: t == ("D", it + 1), "lgkmcnt(0)")
                e("s_barrier")
                freed[0] = it + NS
                wlim[0] = WLIM.get(it, 0)
            if n + A.la < 4 * NIT:
                frag_reads(n + A.la, 0)
            e.lgwait(lambda t: t == ("A", n, 1))
            mfma1(n, 1, 0)
            if n + A.la < 4 * NIT:
                frag_reads(n + A.la, 1)
            e.lgwait(lambda t: t == ("B", n, 1))
            mfma1(n, 0, 1)
            filler()
            if not A.spn and n >= A.pfn and (n - A.pfn) % A.pfs == 0 and (n - A.pfn) // A.pfs < A.pfp:
                w2_prefetch((n - A.pfn) // A.pfs)
            if it == NIT - 1 and not A.noside:
                w_dma(1, wlim[0])
            if n == A.tlb:
                tlb_warm(True)
            if n == A.nn0:
                get_nonce("n1")
            if n == A.zf:
                reg_store()
            if n >= A.qn and (n - A.qn) % A.qs == 0 and (n - A.qn) // A.qs < QP:
                w2p_prefetch((n - A.qn) // A.qs)
            if n == A.qh:
                w2p_half_prefetch()
            if n == A.rn0:
                if A.loc:
                    poll_issue("r", vRG, vPD, SWS)
            if n == A.rn1:
                comb_decide()
            if n == A.np:
                poll_issue("n1", 9, 4, SDBG)
            if n == A.fn0:
                poll_issue("w2a", vFW, 6, SWS)
            if n == A.fn1:
                spin("w2a", vFW, 6, SWS)
            if n >= A.fn1 and n >= A.wst:
                pok[0] = True
            mfma1(n, 1, 1)
            filler(1)
        if it % 3 == 0 or A.tsm:
            e.ts()

    assert not allq
    e("s_barrier")


def gemm_epilogue_stores():
    e("s_nop 6")
    vm0 = list(e.vm)
    for var in ((0, 1) if A.loc else (1,)):
        e.vm = list(vm0)
        if A.loc and var == 0:
            e(f"s_cmp_lg_u32 s{sLOC}, 0")
            e("s_cbranch_scc1 L_epi_far")
        if A.loc and var == 1:
            e.label("L_epi_far")
        k = 0
        for (ft, tt) in [(0, 0), (1, 0), (0, 1), (1, 1)]:
            a = acc(ft, tt)
            h = HOUT + k * 8
            k += 1
            for c in range(2):
                for p in range(4 * c, 4 * c + 4):
                    e(f"v_cvt_pk_bf16_f32 v{h+p}, v{a+2*p}, v{a+2*p+1}")
                for p in range(4 * c, 4 * c + 4):
                    e(f"v_pk_max_i16 v{h+p}, v{h+p}, 0")
                e.vmem(f"buffer_store_dwordx4 {V(h+4*c)}, v{vHS}, {S(SWS)}, s{sH0+ft} offen offset:{tt*2048+c*512}{' sc1' if var else ' '+A.sfl.replace('_',' ')}", ("S",))
        if A.loc and var == 0:
            e("s_branch L_epi_done")
    if A.loc:
        e.label("L_epi_done")


def repack_role():
    sWI, sL = sRB, sLDSW
    e(f"s_sub_u32 s{sWI}, s{sSLOT}, 28")
    e(f"s_lshl_b32 s{sWI}, s{sWI}, 3")
    e(f"s_add_u32 s{sWI}, s{sWI}, s{sXCD}")
    e(f"s_lshl_b32 s{sWI}, s{sWI}, 2")
    e(f"s_add_u32 s{sWI}, s{sWI}, s3")
    e(f"s_mul_i32 s{sL}, s3, {NU*4096}")
    e("v_lshrrev_b32 v2, 3, v1")
    e("v_mul_u32_u24 v2, 1280, v2")
    e("v_and_b32 v3, 7, v1")
    e("v_bfe_u32 v4, v1, 4, 2")
    e("v_lshlrev_b32 v4, 1, v4")
    e("v_xor_b32 v3, v3, v4")
    e("v_lshl_add_u32 v2, v3, 4, v2")
    for i in range(4):
        e(f"v_add_u32 v{vX+i}, {i*(10240-1024)}, v2")
    e("s_waitcnt lgkmcnt(0)")
    if A.pf and A.pfe & 2:
        code_prefetch()
    srd(SDBG, 12, 256)
    e("s_cmp_lg_u32 s{0}, 124".format(sWI))
    e("s_cbranch_scc1 L_nononce")
    e(f"s_memrealtime s[{sNON}:{sNON+1}]")
    e("s_waitcnt lgkmcnt(0)")
    e(f"s_or_b32 s{sNON+1}, s{sNON+1}, 0x40000000")
    e(f"v_mov_b32 v2, s{sNON}")
    e(f"v_mov_b32 v3, s{sNON+1}")
    e("v_lshlrev_b32 v4, 24, v1")
    e(f"buffer_store_dwordx2 v[2:3], v4, {S(SDBG)}, 0 offen sc1")
    e.label("L_nononce")
    get_xcc()
    srd(SOUT, 10, 2048 * 1280)
    e(f"s_mov_b32 s10, {1728*1280}")
    e(f"s_mov_b32 s11, 0x00020000")
    for k in range(NU):
        e(f"s_add_u32 s{sT0}, s{sWI}, {128*k}")
        e(f"s_mul_i32 s{sT1}, s{sT0}, 205")
        e(f"s_lshr_b32 s{sT1}, s{sT1}, 11")
        e(f"s_mul_i32 s{sT2}, s{sT1}, 10")
        e(f"s_sub_u32 s{sT2}, s{sT0}, s{sT2}")
        e(f"s_mul_i32 s{sT1}, s{sT1}, 40960")
        e(f"s_lshl_b32 s{sT2}, s{sT2}, 7")
        e(f"s_add_u32 s{sT1}, s{sT1}, s{sT2}")
        e(f"s_add_u32 s{sT1}, s{sT1}, {NN*163840}")
        e(f"s_cmp_ge_u32 s{sT0}, {NUNIT}")
        e(f"s_cselect_b32 s{sT1}, {BIG}, s{sT1}")
        e(f"s_add_u32 m0, s{sL}, {k*4096}")
        e("s_nop 0")
        for i in range(4):
            e.vmem(f"buffer_load_dwordx4 v{vX+i}, {S(SW2)}, s{sT1} offen offset:{1024*i} lds", ("R", k))
    srd(SWS, 14, WS_SIZE)
    if not A.spn:
        w2_prefetch()
    if A.pf and not A.pfe & 2:
        code_prefetch()
    e("v_lshrrev_b32 v2, 5, v1")
    e("v_bfe_u32 v3, v1, 4, 1")
    e("v_bfe_u32 v4, v1, 2, 2")
    e("v_lshlrev_b32 v2, 4, v2")
    e("v_lshl_add_u32 v2, v3, 2, v2")
    e("v_add_u32 v2, v2, v4")
    e("v_lshlrev_b32 v2, 7, v2")
    e("v_and_b32 v5, 1, v1")
    e("v_lshl_add_u32 v2, v5, 3, v2")
    e(f"v_add_u32 v2, s{sL}, v2")
    e("v_lshrrev_b32 v4, 1, v4")
    e("v_lshl_add_u32 v3, v3, 1, v4")
    e("v_lshlrev_b32 v3, 1, v3")
    e("v_bfe_u32 v5, v1, 1, 1")
    for b in range(4):
        e(f"v_xor_b32 v6, {2*b}, v3")
        e("v_or_b32 v6, v6, v5")
        e(f"v_lshl_add_u32 v{vW+b}, v6, 4, v2")
    e(f"s_mov_b32 s{sREG}, 0")
    p2_setup()
    poll_issue("n2", 9, 4, SDBG)
    e.ts()
    R = 24
    for k in range(NU):
        e.vmwait(lambda t: t == ("R", k))
        for b in range(4):
            r = R + (k * 4 + b) * 4
            for q in range(2):
                e.lds(f"ds_read_b64_tr_b16 v[{r+2*q}:{r+2*q+1}], v{vW+b} offset:{k*4096+q*1024}", ("T", k, b))
        e(f"s_add_u32 s{sT0}, s{sWI}, {128*k}")
        e(f"s_lshl_b32 s{sT1}, s{sT0}, 12")
        e(f"s_add_u32 s{sT1}, s{sT1}, {W2P_OFF}")
        e(f"s_cmp_ge_u32 s{sT0}, {NUNIT}")
        e(f"s_cselect_b32 s{sT1}, {BIG}, s{sT1}")
        for b in range(4):
            r = R + (k * 4 + b) * 4
            e.lgwait(lambda t: t == ("T", k, b))
            e.vmem(f"buffer_store_dwordx4 {V(r)}, v{vWL}, {S(SWS)}, s{sT1} offen offset:{b*1024} sc1", ("S", k))
        if k == 0:
            get_nonce("n2")
            if A.sreg:
                reg_store()
    if A.spn:
        spare_nat_prefetch()
    e.ts()
    for k in range(NU):
        e.vmwait(lambda t: t == ("S", k))
        e(f"s_add_u32 s{sT0}, s{sWI}, {128*k}")
        e(f"s_lshl_b32 s{sT1}, s{sT0}, 7")
        e(f"s_add_u32 s{sT1}, s{sT1}, {W2F_OFF}")
        e(f"s_cmp_ge_u32 s{sT0}, {NUNIT}")
        e(f"s_cselect_b32 s{sT1}, {BIG}, s{sT1}")
        e.vmem(f"buffer_store_dwordx2 v[2:3], v{vZ}, {S(SWS)}, s{sT1} offen sc1", ("F", k))
    if not A.sreg:
        reg_store()
    if A.tlb < 99:
        tlb_warm(False)
    e.ts()
    e("s_barrier")
    if A.spq:
        spare_pack_prefetch()


def kdesc(name):
    return f""".amdhsa_kernel {name}
  .amdhsa_next_free_vgpr 512
  .amdhsa_next_free_sgpr 102
  .amdhsa_accum_offset 256
  .amdhsa_group_segment_fixed_size 0
  .amdhsa_kernarg_size 48
  .amdhsa_user_sgpr_count 2
  .amdhsa_user_sgpr_kernarg_segment_ptr 1
  .amdhsa_system_sgpr_workgroup_id_x 1
.end_amdhsa_kernel"""


LDS = max(NS * 32768, 81920)
hdr = [f"; @launch grid=(256,1,1) block=(256,1,1) lds={LDS}",
       '.amdgcn_target "amdgcn-amd-amdhsa--gfx950"', ".text"]

e.l.append(f".globl {KN}\n.p2align 8\n.type {KN},@function\n{KN}:")
e("s_load_dwordx8 s[4:11], s[0:1], 0")
e(f"s_getpc_b64 s[{sPC}:{sPC+1}]")
e.label("L_pc")
e("s_load_dwordx4 s[12:15], s[0:1], 32")
e(f"s_cmp_ge_u32 s2, 256")
e(f"s_cbranch_scc1 L_end")
e("v_and_b32 v1, 63, v0")
e("v_lshrrev_b32 v2, 6, v0")
e(f"s_and_b32 s{sXCD}, s2, 7")
e("v_readfirstlane_b32 s3, v2")
e(f"s_lshr_b32 s{sSLOT}, s2, 3")
e.ts()
e(f"s_cmp_ge_u32 s{sSLOT}, 28")
e("s_cbranch_scc1 L_repack")
gemm_role()
if not A.efirst:
    w_dma(70)
if A.rn1 >= 40:
    comb_decide()
gemm_epilogue_stores()
w_dma(70)
e.ts()
if A.fn1 >= 40:
    spin("w2a", vFW, 6, SWS)
for b in range(A.wpre):
    w_loads(1)
    w_tr(3)
e.vmwait(lambda t: t == ("S",))
h_flag_store()
if A.fbar:
    e("s_barrier")
e.ts()
w_loads(70 - ppos[0] - A.wlate - A.wp2)
e.ts()
nts_join = e.nts
vm_join = list(e.vm)
lg_join = list(e.lg)
tr_join = trpos[0]
pp_join = ppos[0]
e("s_branch L_join")
e.label("L_repack")
e.vm = []
e.lg = []
e.nts = 1
wpos[0] = 0
trpos[0] = 0
ppos[0] = NN * 5
repack_role()
if not A.sord:
    w_dma(70)
poll_issue("w2b", vFW, 6, SWS)
spin("w2b", vFW, 6, SWS, slp=A.ssleep)
e.ts()
w_loads(pp_join - NN * 5)
if A.sord:
    w_dma(70)
w_tr(tr_join)
assert trpos[0] == tr_join and ppos[0] == pp_join
e("s_waitcnt vmcnt(0) lgkmcnt(0)")
while e.nts < nts_join and not A.tsm and not A.ts2:
    e.ts()
e.vm = vm_join
e.lg = lg_join
if A.tsm:
    e.nts = 13
e.label("L_join")
poll_issue("h", vFL, 6, SWS)
w_loads(A.wlate)
w_tr(10 * A.wjoin - trpos[0])
spin("h", vFL, 6, SWS)
e.ts()
if A.diag:
    e(f"s_mov_b32 s94, s{sCNT}")
    e(f"s_mov_b32 s95, 0")
phase2_main()
diag_dump()
e.label("L_end")
e.label("L_codeend")
e("s_endpgm")

body = "\n".join(e.l)
ninst = sum(1 for x in e.l if x.startswith("    "))
npf = (ninst * 8 + 8191) // 8192
pf = "\n".join(f"    s_min_u32 s{sT0}, s{sJ}, L_codeend-L_pc\n    s_load_dword s63, s[{sPC}:{sPC+1}], s{sT0}\n    s_add_u32 s{sJ}, s{sJ}, 8192" for k in range(npf))
body = body.replace("@@PF@@", pf)
print("\n".join(hdr) + "\n" + body + "\n" + '.section .rodata,"a"\n.p2align 6\n' + kdesc(KN) + "\n")
```
